```python
import torch

def _softmax(x, axis=-1):
    return torch.softmax(x, dim=axis)
def _gelu(x):
    return torch.nn.functional.gelu(x, approximate="tanh")
def _silu(x):
    return torch.nn.functional.silu(x)
def _sigmoid(x):
    return torch.sigmoid(x)
def _layernorm(x, axis=-1, eps=1e-5):
    m = x.mean(dim=axis, keepdim=True)
    v = x.var(dim=axis, keepdim=True, unbiased=False)
    return (x - m) / torch.sqrt(v + eps)
def _scatter_add(tgt, idx, src, axis=0):
    return tgt.clone().index_add_(axis, idx, src)
def _segment_sum(src, seg, n):
    out = torch.zeros((n,) + src.shape[1:], dtype=src.dtype)
    return out.index_add_(0, seg, src)
def _pad(x, pw):
    flat = tuple(v for pair in reversed(pw) for v in pair)
    return torch.nn.functional.pad(x, flat)

kernel_name = 'gated_mix__sliding_local_dilated__softmax_full_mha__prompt'

def setup_inputs():

    _w = (lambda a: (lambda t: t.to(torch.bfloat16) if t.is_floating_point() else t)(torch.as_tensor(a)))
    def _A_setup():
        B, S, D = 1, 2048, 640
        return {
            "x": _w((lambda *s: torch.randn(*s, dtype=torch.bfloat16) * 0.05)(B, S, D)),
            "wqkv": _w((lambda *s: torch.randn(*s, dtype=torch.bfloat16) * 1.6)(D, 3 * D)),
            "wo": _w((lambda *s: torch.randn(*s, dtype=torch.bfloat16) * 0.05)(D, D)),
        }
    _A_in = _A_setup()

    def _B_setup():
        B, S, D = 1, 2048, 640
        return {
            "x": _w((lambda *s: torch.randn(*s, dtype=torch.bfloat16) * 0.05)(B, S, D)),
            "wqkv": _w((lambda *s: torch.randn(*s, dtype=torch.bfloat16) * 1.6)(D, 3 * D)),
            "wo": _w((lambda *s: torch.randn(*s, dtype=torch.bfloat16) * 0.1)(D, D)),
        }
    _B_in = _B_setup()

    return {
        "A_x": _A_in["x"],
        "A_wqkv": _A_in["wqkv"],
        "A_wo": _A_in["wo"],
        "B_x": _B_in["x"],
        "B_wqkv": _B_in["wqkv"],
        "B_wo": _B_in["wo"],
        "gate_w": _w((lambda *s: torch.randn(*s, dtype=torch.bfloat16) * 0.05)(640) * 16.0),
    }

def reference(A_x, A_wqkv, A_wo, B_x, B_wqkv, B_wo, gate_w):
    def _A_ref(x, wqkv, wo):
        B, S, D = x.shape
        H = 32; Dh = D // H
        W, dil = 8, 2
        qkv = (lambda x, *d: x.permute(*d))((x @ wqkv).reshape(B, S, 3, H, Dh), 2, 0, 3, 1, 4)
        q, k, v = qkv[0], qkv[1], qkv[2]
        scale = Dh ** -0.5
        pos = torch.arange(S)
        off = torch.arange(W) * dil
        idx = pos[:, None] - off[None, :]
        mask = idx >= 0
        idx_c = torch.where(mask, idx, 0).reshape(-1)
        kg = k[:, :, idx_c, :].reshape(B, H, S, W, Dh)
        vg = v[:, :, idx_c, :].reshape(B, H, S, W, Dh)
        logits = torch.einsum("bhsd,bhswd->bhsw", q, kg) * scale
        logits = torch.where(mask[None, None, :, :], logits, -1e9)
        attn = _softmax(logits, axis=-1)
        o = torch.einsum("bhsw,bhswd->bhsd", attn, vg)
        return (lambda x, *d: x.permute(*d))(o, 0, 2, 1, 3).reshape(B, S, D) @ wo

    def _B_ref(x, wqkv, wo):
        B, S, D = x.shape
        H = 32; Dh = D // H
        qkv = (lambda x, *d: x.permute(*d))((x @ wqkv).reshape(B, S, 3, H, Dh), 2, 0, 3, 1, 4)
        q, k, v = qkv[0], qkv[1], qkv[2]
        scale = Dh ** -0.5
        scores = torch.einsum("bhqd,bhkd->bhqk", q, k) * scale
        p = _softmax(scores, axis=-1)
        o = torch.einsum("bhqk,bhkd->bhqd", p, v)
        return (lambda x, *d: x.permute(*d))(o, 0, 2, 1, 3).reshape(B, S, D) @ wo

    x = A_x
    g = _sigmoid((x * gate_w).sum(-1, keepdims=True))
    a = _A_ref(x, A_wqkv, A_wo)
    b = _B_ref(x, B_wqkv, B_wo)
    return g * a + (1 - g) * b
```

```python
import re

TRANS = ("v_exp_f32","v_log_f32","v_rcp_f32","v_rsq_f32","v_sqrt_f32","v_sin_f32","v_cos_f32","v_exp_f16","v_rcp_f16")

def mfma_passes(op):
    if "32x32x16" in op or "32x32x8_" in op: return 8
    if "16x16x32" in op or "16x16x16" in op: return 4
    if "32x32x4_2b" in op: return 16
    raise ValueError(op)

_reg_re = re.compile(r"^(-?)(abs\()?([vas])(\d+)\)?$")
_rng_re = re.compile(r"^(-?)([vas])\[(\d+):(\d+)\]$")

def parse_operand(tok):
    tok = tok.strip()
    m = _rng_re.match(tok)
    if m:
        k = m.group(2)
        return {(k,i) for i in range(int(m.group(3)), int(m.group(4))+1)}
    m = _reg_re.match(tok)
    if m:
        return {(m.group(3), int(m.group(4)))}
    if tok in ("vcc","vcc_lo","vcc_hi"): return {("vcc",0)}
    if tok in ("exec","exec_lo","exec_hi"): return {("exec",0)}
    if tok == "m0": return {("m0",0)}
    if tok == "scc": return {("scc",0)}
    return set()

class Ins:
    __slots__=("text","op","ops","wr","rd","kind","nops","srcC","srcAB","mods")
    def __init__(self, text):
        self.text = text
        t = text.split(";")[0].strip()
        parts = t.split(None,1)
        self.op = parts[0]
        rest = parts[1] if len(parts)>1 else ""
        ops=[]; cur=""; depth=0
        for ch in rest:
            if ch=="[" : depth+=1
            if ch=="]" : depth-=1
            if ch=="," and depth==0:
                ops.append(cur.strip()); cur=""
            else: cur+=ch
        if cur.strip(): ops.append(cur.strip())
        self.mods=""
        if ops:
            last=ops[-1].split(None,1)
            if len(last)>1 and not last[0].startswith("hwreg"):
                ops[-1]=last[0]; self.mods=last[1]
        self.ops=ops
        self.wr=set(); self.rd=set(); self.srcC=set(); self.srcAB=set()
        self.nops=1
        op=self.op
        P=[parse_operand(o) for o in ops]
        if op=="s_nop":
            self.kind="nop"; self.nops=int(ops[0],0)+1
        elif op.startswith("v_mfma"):
            self.kind="mfma"; self.wr=P[0]; self.srcAB=P[1]|P[2]; self.srcC=P[3]; self.rd=self.srcAB|self.srcC
        elif op.startswith("v_cmp"):
            self.kind="valu"; self.wr=P[0]; self.rd=set().union(*P[1:])
            if op.startswith("v_cmpx"): self.wr|={("exec",0)}
        elif op.startswith("v_readfirstlane") or op.startswith("v_readlane"):
            self.kind="valu"; self.wr=P[0]; self.rd=set().union(*P[1:])
        elif op.startswith("v_permlane") and "swap" in op:
            self.kind="valu"; self.wr=P[0]|P[1]; self.rd=P[0]|P[1]
        elif op.startswith("v_"):
            self.kind="valu"; self.wr=set(P[0]);
            srcs=P[1:]
            if op.startswith(("v_add_co","v_sub_co","v_addc_co","v_subb_co","v_subrev_co")):
                self.wr|=P[1]; srcs=P[2:]
            self.rd=set().union(*srcs) if srcs else set()
            if op.startswith(("v_fmac","v_dot2c","v_pk_fmac")) or "dpp" in op or "row_" in self.mods or "quad_perm" in self.mods:
                self.rd|=P[0]
            if op.startswith("v_cndmask") and len(ops)==3: self.rd|={("vcc",0)}
        elif op.startswith("ds_read") or op.startswith("ds_bpermute") or op.startswith("ds_swizzle"):
            self.kind="ds"; self.wr=P[0]; self.rd=set().union(*P[1:])
        elif op.startswith("ds_"):
            self.kind="ds"; self.rd=set().union(*P)
        elif op.startswith("buffer_load") or op.startswith("global_load"):
            if "lds" in self.mods.split() or op.startswith("global_load_lds"):
                self.kind="vmem_lds"; self.rd=set().union(*P)|{("m0",0)}
            else:
                self.kind="vmem"; self.wr=P[0]; self.rd=set().union(*P[1:])
        elif op.startswith("buffer_store") or op.startswith("global_store") or op.startswith("buffer_atomic") or op.startswith("global_atomic"):
            self.kind="vmem_st"; self.rd=set().union(*P)
        elif op.startswith("s_load") or op.startswith("s_memtime") or op.startswith("s_memrealtime"):
            self.kind="smem"; self.wr=P[0]; self.rd=set().union(*P[1:]) if len(P)>1 else set()
        elif op.startswith("s_cmp") or op.startswith("s_cbranch") or op in ("s_branch","s_barrier","s_waitcnt","s_endpgm","s_setprio","s_sleep","s_bitcmp1_b32","s_bitcmp0_b32"):
            self.kind="salu"; self.rd=set().union(*P) if P else set()
        elif op.startswith("s_"):
            self.kind="salu"; self.wr=set(P[0]) if P else set(); self.rd=set().union(*P[1:]) if len(P)>1 else set()
            if "saveexec" in op: self.wr|={("exec",0)}
        else:
            raise ValueError("unknown op: "+text)

def is_vg(r): return r[0] in ("v","a")

def check_pairs(seq, where, errs):
    n=len(seq)
    for i,a in enumerate(seq):
        if a.kind in ("nop",): continue
        dist=0
        for j in range(i+1, n):
            b=seq[j]
            if dist>=21: break
            need=0; why=""
            def req(k,w):
                nonlocal need,why
                if k>need: need=k; why=w
            if a.kind=="valu":
                vw={r for r in a.wr if is_vg(r)}
                sw={r for r in a.wr if r[0] in ("s","vcc")}
                if b.kind=="mfma" and vw & b.rd: req(2,"VALU->MFMA")
                if a.op.split("_e")[0] in TRANS or a.op in TRANS:
                    if b.kind=="valu" and b.op not in TRANS and vw & b.rd: req(1,"trans->valu")
                    if b.kind=="valu" and b.op in TRANS and vw & b.rd: req(1,"trans->trans(pad anyway)")
                if b.kind=="valu" and b.op.startswith(("v_readfirstlane","v_readlane")) and vw & b.rd: req(1,"valu->readlane")
                if b.kind=="valu" and b.op.startswith("v_permlane") and vw & b.rd: req(2,"valu->permlane")
                if b.kind=="valu" and ("dpp" in b.op or "row_" in b.mods or "quad_perm" in b.mods) and vw & b.rd: req(2,"valu->dpp")
                if b.kind=="valu" and sw & b.rd: req(2,"valu sgpr->valu read")
                if b.kind in ("vmem","vmem_lds","vmem_st") and {r for r in sw if r[0]=="s"} & b.rd: req(5,"valu sgpr->vmem")
                if ("exec",0) in a.wr and b.kind in ("valu","mfma"): req(4,"valu exec")
            if a.kind=="mfma":
                p=mfma_passes(a.op)
                if b.kind=="mfma":
                    if a.wr & b.srcAB: req({2:5,4:8,8:12,16:20}[p],"mfma D->AB")
                    if a.wr & b.srcC:
                        if a.wr==b.srcC and mfma_passes(b.op)==p: pass
                        else: req({2:4,4:6,8:10,16:18}[p],"mfma D->C overlap")
                    if (a.wr & b.wr) and not (a.wr==b.wr and mfma_passes(b.op)==p and (b.srcC==a.wr)):
                        if not (a.wr & b.srcC): req({2:4,4:6,8:10,16:18}[p],"mfma D->D WAW")
                elif b.kind in ("valu",):
                    if a.wr & (b.rd|b.wr): req({2:5,4:8,8:12,16:20}[p],"mfma D->valu")
                    if a.srcC & b.wr: req({2:1,4:3,8:7,16:15}[p],"mfma C WAR")
                elif b.kind in ("ds","vmem","vmem_lds","vmem_st"):
                    if a.wr & (b.rd|b.wr): req({2:5,4:8,8:12,16:20}[p],"mfma D->mem")
                    if a.srcC & b.wr: req({2:1,4:3,8:7,16:15}[p],"mfma C WAR(load)")
            if a.kind=="salu" and ("m0",0) in a.wr and b.kind=="vmem_lds": req(1,"m0->ldsdma")
            if a.kind=="vmem_st" and ("x4" in a.op or "x3" in a.op):
                data = parse_operand(a.ops[0]) if a.op.startswith("buffer") else parse_operand(a.ops[1])
                if b.kind=="valu" and data & b.wr: req(2,"store data WAR")
                elif data & b.wr: req(1,"store data WAR")
            if a.kind=="ds" and a.op.startswith("ds_write") and ("b128" in a.op or "b96" in a.op):
                pass
            if need>dist:
                errs.append(f"[{where}] hazard {why}: need {need} have {dist}:\n    {a.text}\n    {b.text}")
            dist+=b.nops
    return errs

class Asm:
    def __init__(self):
        self.lines=[]
        self.uid=0
    def __call__(self, s):
        for l in s.split("\n"):
            l=l.strip()
            if l: self.lines.append(l)
    def label(self, name): self.lines.append(name+":")
    def newlabel(self, base):
        self.uid+=1
        return f"{base}_{self.uid}"
    def nop(self,n):
        while n>0:
            k=min(n,16); self(f"s_nop {k-1}"); n-=k
    def text(self):
        out=[]
        for l in self.lines:
            if l.endswith(":") or l.startswith(".") or l.startswith(";"): out.append(l)
            else: out.append("    "+l)
        return "\n".join(out)+"\n"
    def check(self, name=""):
        items=[]
        labels={}
        for l in self.lines:
            if l.startswith(";") or l.startswith("."): continue
            if l.endswith(":"):
                labels[l[:-1]]=len(items); continue
            items.append(Ins(l))
        errs=[]
        seg=[]
        for it in items:
            seg.append(it)
            if it.op in ("s_branch","s_endpgm"):
                check_pairs(seg,name,errs); seg=[]
        check_pairs(seg,name,errs)
        for i,it in enumerate(items):
            if it.op.startswith("s_cbranch") or it.op=="s_branch":
                tgt=it.ops[0]
                if tgt in labels:
                    t=labels[tgt]
                    pre=items[max(0,i-24):i+1]
                    for k in range(len(pre)-2,-1,-1):
                        if pre[k].op in ("s_branch","s_endpgm"):
                            pre=pre[k+1:]; break
                    post=items[t:t+24]
                    for k,x in enumerate(post):
                        if x.op in ("s_branch","s_endpgm"):
                            post=post[:k+1]; break
                    e2=[]
                    check_pairs(pre+post,name+f"/edge->{tgt}",e2)
                    errs+=e2
        seen=set(); out=[]
        for e in errs:
            if e not in seen: seen.add(e); out.append(e)
        return out
```

```python
import sys, math, struct
from asmgen import Asm

S=2048; D=640; H=32; DH=20
NAME="gated_mix__sliding_local_dilated__softmax_full_mha__prompt"
OFF_G=0; OFF_OMG=8192
QIMG=32*64*1280; KVIMG=32*64*2560
OFF_QA=0x10000; OFF_QB=OFF_QA+QIMG; OFF_KVA=OFF_QB+QIMG; OFF_KVB=OFF_KVA+KVIMG
OFF_O=OFF_KVB+KVIMG; OIMG=128*40*1024
OFF_WO=OFF_O+OIMG; WOIMG=40*40*1024
WS_END=OFF_WO+WOIMG
QSCALE=(DH**-0.5)*1.4426950408889634
def f32bits(x): return struct.unpack("<I",struct.pack("<f",x))[0]

def srd(a, d, lo, hi, nbytes, off=0):
    if off:
        a(f"s_add_u32 s{d}, s{lo}, {off}")
        a(f"s_addc_u32 s{d+1}, s{hi}, 0")
    else:
        a(f"s_mov_b32 s{d}, s{lo}")
        a(f"s_mov_b32 s{d+1}, s{hi}")
    a(f"s_mov_b32 s{d+2}, {nbytes}")
    a(f"s_mov_b32 s{d+3}, 0x20000")

def csel(a, dst, t, f):
    a(f"s_mov_b32 {dst}, {f}")
    a(f"s_cselect_b32 {dst}, {t}, {dst}")

def kernel_header(a, name):
    a(f".globl {name}")
    a(f".p2align 8")
    a(f".type {name},@function")
    a.label(name)

def kernel_desc(name, vgpr, sgpr, accum=None):
    if accum is None: accum=(vgpr+3)//4*4
    return f""".section .rodata,"a"
.p2align 6
.amdhsa_kernel {name}
  .amdhsa_next_free_vgpr {vgpr}
  .amdhsa_next_free_sgpr {sgpr}
  .amdhsa_accum_offset {accum}
  .amdhsa_group_segment_fixed_size 0
  .amdhsa_kernarg_size 80
  .amdhsa_user_sgpr_count 2
  .amdhsa_user_sgpr_kernarg_segment_ptr 1
  .amdhsa_system_sgpr_workgroup_id_x 1
.end_amdhsa_kernel
.text
"""

K1_STAGE=49152
K1_LDS=3*K1_STAGE
def gen_k1():
    a=Asm(); name="qkv_kernel"
    kernel_header(a,name)
    SX,SW,SO=4,8,12
    sWv,sWm,sWn,sRb,sCbp,sSec,sBr,sCbpp=16,17,18,19,20,21,22,23
    sOffX,sOffW,sStep,sCur,sMX,sMW=24,25,26,27,28,29
    sT0,sT1,sDelta,sSo0,sSo1,sTS=30,31,32,33,34,35
    sHS,sScale=46,47
    vXo=10; vWo=14; aX=16; aW=20
    def Xf(b,mt): return 24+b*16+mt*4
    def Wf(b,nt): return 24+b*16+8+nt*4
    def acc(mt,nt): return 64+(mt*2+nt)*16
    a("s_cmp_ge_u32 s2, 256")
    a("s_cbranch_scc1 K1_END")
    a("s_load_dwordx4 s[36:39], s[0:1], 0")
    a("s_load_dwordx2 s[40:41], s[0:1], 32")
    a("s_load_dwordx2 s[42:43], s[0:1], 72")
    a("v_and_b32 v1, 63, v0")
    a("v_lshrrev_b32 v2, 6, v0")
    a("s_and_b32 s30, s2, 7")
    a("v_readfirstlane_b32 s16, v2")
    a("s_lshr_b32 s31, s2, 3")
    a("s_cmp_ge_u32 s31, 30")
    a("s_cbranch_scc1 K1_SPARE")
    a("s_mul_i32 s30, s30, 30")
    a("s_add_u32 s30, s30, s31")
    a("s_and_b32 s19, s30, 3")
    a("s_cmp_ge_u32 s30, 120")
    a("s_cselect_b32 s31, 120, 0")
    a("s_cselect_b32 s44, 4, 0")
    a("s_sub_u32 s30, s30, s31")
    a("s_add_u32 s19, s19, s44")
    a("s_lshr_b32 s20, s30, 2")
    a("s_cmp_ge_u32 s20, 15")
    a("s_cselect_b32 s22, 1, 0")
    a("s_cselect_b32 s31, 15, 0")
    a("s_sub_u32 s20, s20, s31")
    a("s_mov_b32 s21, 0")
    a("s_cmp_ge_u32 s20, 5")
    a("s_cselect_b32 s21, 1, s21")
    a("s_cmp_ge_u32 s20, 10")
    a("s_cselect_b32 s21, 2, s21")
    a("s_mul_i32 s31, s21, 5")
    a("s_sub_u32 s23, s20, s31")
    a("s_and_b32 s17, s16, 3")
    a("s_lshr_b32 s18, s16, 2")
    a("s_waitcnt lgkmcnt(0)")
    srd(a,SX,36,37,S*D*2)
    a("s_cmp_eq_u32 s22, 0")
    a("s_cselect_b32 s8, s38, s40")
    a("s_cselect_b32 s9, s39, s41")
    a(f"s_mov_b32 s10, {D*3*D*2}")
    a("s_mov_b32 s11, 0x20000")
    a("s_lshl_b32 s30, s19, 8")
    a("s_lshl_b32 s31, s16, 5")
    a("s_add_u32 s44, s30, s31")
    a("s_lshl_b32 s31, s17, 6")
    a("s_add_u32 s45, s30, s31")
    a("s_add_u32 s45, s45, s18")
    a("s_cmp_eq_u32 s22, 0")
    a("s_cselect_b32 s44, s45, s44")
    csel(a,"s45",2560,1280)
    a("s_mul_i32 s44, s44, 1280")
    a("v_lshrrev_b32 v2, 3, v1")
    a("v_mul_lo_u32 v2, v2, s45")
    a("v_add_u32 v2, s44, v2")
    a("v_and_b32 v3, 7, v1")
    a("v_lshrrev_b32 v4, 4, v1")
    a("v_xor_b32 v5, v3, v4")
    a("v_xor_b32 v6, 4, v5")
    a("v_lshlrev_b32 v5, 4, v5")
    a("v_lshlrev_b32 v6, 4, v6")
    a("s_lshl_b32 s45, s45, 3")
    a("s_sub_u32 s45, s45, 1024")
    for j in range(4):
        a(f"v_add_u32 v{vXo+j}, v2, v{5 if j%2==0 else 6}")
        if j>0:
            a(f"s_mul_i32 s30, s45, {j}")
            a(f"v_add_u32 v{vXo+j}, s30, v{vXo+j}")
    a("s_lshl_b32 s30, s16, 3")
    a("v_add_u32 v2, s30, v4")
    a("v_mul_u32_u24 v2, 3840, v2")
    a("v_and_b32 v3, 15, v1")
    a("v_lshlrev_b32 v5, 2, v4")
    a("v_xor_b32 v3, v3, v5")
    a("v_lshlrev_b32 v3, 4, v3")
    a("v_add_u32 v2, v2, v3")
    a("s_lshl_b32 s30, s20, 8")
    a(f"v_add_u32 v{vWo}, s30, v2")
    a(f"v_add_u32 v{vWo+1}, {4*3840-1024}, v{vWo}")
    a("s_lshl_b32 s28, s16, 12")
    a("s_lshl_b32 s29, s16, 11")
    a("s_add_u32 s29, s29, 32768")
    def dma(stage_sgpr_expr_off):
        a(f"s_add_u32 m0, {stage_sgpr_expr_off}, s28")
        a("s_nop 0")
        for j in range(4):
            a(f"buffer_load_dwordx4 v{vXo+j}, s[{SX}:{SX+3}], s{sOffX} offen offset:{j*1024} lds")
        a(f"s_add_u32 m0, {stage_sgpr_expr_off}, s29")
        a("s_nop 0")
        for j in range(2):
            a(f"buffer_load_dwordx4 v{vWo+j}, s[{SW}:{SW+3}], s{sOffW} offen offset:{j*1024} lds")
        a(f"s_add_u32 s{sOffX}, s{sOffX}, 128")
        a(f"s_add_u32 s{sOffW}, s{sOffW}, {64*3840}")
    a(f"s_mov_b32 s{sOffX}, 0")
    a(f"s_mov_b32 s{sOffW}, 0")
    for st in range(3):
        a(f"s_mov_b32 s30, {st*K1_STAGE}")
        dma("s30")
    a("v_and_b32 v2, 31, v1")
    a("s_lshl_b32 s30, s17, 6")
    a("v_add_u32 v3, s30, v2")
    a("v_lshlrev_b32 v3, 7, v3")
    a("v_lshrrev_b32 v4, 5, v1")
    a("v_bfe_u32 v5, v1, 1, 3")
    a("v_xor_b32 v5, v4, v5")
    a("v_lshlrev_b32 v5, 4, v5")
    a(f"v_add_u32 v{aX}, v3, v5")
    for ks in range(1,4):
        a(f"v_xor_b32 v{aX+ks}, {32*ks}, v{aX}")
    a("v_bfe_u32 v5, v1, 2, 2")
    a("v_lshlrev_b32 v6, 3, v4")
    a("v_add_u32 v6, v6, v5")
    a("v_lshlrev_b32 v6, 8, v6")
    a("v_bfe_u32 v7, v1, 4, 1")
    a("v_lshlrev_b32 v7, 1, v7")
    a("v_bfe_u32 v8, v1, 1, 1")
    a("v_add_u32 v7, v7, v8")
    a("s_lshl_b32 s30, s18, 3")
    a("v_add_u32 v7, s30, v7")
    a("v_lshlrev_b32 v5, 2, v5")
    a("v_xor_b32 v7, v7, v5")
    a("v_lshlrev_b32 v7, 4, v7")
    a("v_and_b32 v8, 1, v1")
    a("v_lshlrev_b32 v8, 3, v8")
    a("v_add3_u32 v6, v6, v7, v8")
    a(f"v_add_u32 v{aW}, 32768, v6")
    a(f"v_xor_b32 v{aW+1}, 64, v{aW}")
    for i in range(64): a(f"v_mov_b32 v{64+i}, 0")
    a("s_cmp_eq_u32 s22, 0")
    csel(a,"s30",OFF_QA,OFF_QB)
    csel(a,"s31",OFF_KVA,OFF_KVB)
    a("s_cmp_eq_u32 s21, 0")
    a("s_cselect_b32 s30, s30, s31")
    csel(a,"s14",QIMG,KVIMG)
    csel(a,"s35",1280,2560)
    a("s_add_u32 s12, s42, s30")
    a("s_addc_u32 s13, s43, 0")
    a("s_mov_b32 s15, 0x20000")
    a("s_lshl_b32 s46, s35, 6")
    a("s_lshl_b32 s30, s19, 3")
    a("s_lshl_b32 s31, s17, 1")
    a("s_add_u32 s44, s30, s31")
    a("s_lshr_b32 s30, s17, 1")
    a("s_lshl_b32 s30, s30, 5")
    a("s_lshl_b32 s31, s19, 2")
    a("s_add_u32 s30, s30, s31")
    a("s_and_b32 s31, s17, 1")
    a("s_lshl_b32 s31, s31, 1")
    a("s_add_u32 s30, s30, s31")
    a("s_cmp_eq_u32 s22, 0")
    a("s_cselect_b32 s30, s30, s44")
    a("s_mul_i32 s33, s30, s35")
    a("s_add_u32 s34, s33, s35")

    def reads(b,ks):
        for mt in range(2):
            a(f"ds_read_b128 v[{Xf(b,mt)}:{Xf(b,mt)+3}], v{aX+ks} offset:{mt*4096}")
        for nt in range(2):
            for u in range(2):
                a(f"ds_read_b64_tr_b16 v[{Wf(b,nt)+2*u}:{Wf(b,nt)+2*u+1}], v{aW+nt} offset:{ks*4096+u*1024}")
    def mf(b,mt,nt,vmode):
        d=acc(mt,nt)
        A,B=(Xf(b,mt),Wf(b,nt)) if vmode else (Wf(b,nt),Xf(b,mt))
        a(f"v_mfma_f32_32x32x16_bf16 v[{d}:{d+15}], v[{A}:{A+3}], v[{B}:{B+3}], v[{d}:{d+15}]")
    def mfmas(b,vmode):
        for mt in range(2):
            for nt in range(2): mf(b,mt,nt,vmode)

    def mainloop(vmode,tag):
        a("s_waitcnt vmcnt(12)")
        a("s_barrier")
        reads(0,0)
        a(f"s_mov_b32 s{sStep}, 0")
        a(f"s_mov_b32 s{sCur}, 0")
        a.label(f"K1_LOOP_{tag}")
        for ks in range(3):
            reads((ks+1)&1,ks+1)
            a("s_waitcnt lgkmcnt(6)")
            mfmas(ks&1,vmode)
        a(f"s_cmp_eq_u32 s{sCur}, {2*K1_STAGE}")
        csel(a,f"s{sDelta}",-2*K1_STAGE & 0xffffffff,K1_STAGE)
        for i in range(4): a(f"v_add_u32 v{aX+i}, s{sDelta}, v{aX+i}")
        for i in range(2): a(f"v_add_u32 v{aW+i}, s{sDelta}, v{aW+i}")
        a(f"s_cmp_eq_u32 s{sStep}, 9")
        a(f"s_cbranch_scc1 K1_LAST_{tag}")
        a(f"s_cmp_ge_u32 s{sStep}, 8")
        a(f"s_cbranch_scc1 K1_W0_{tag}")
        a("s_waitcnt vmcnt(6) lgkmcnt(0)")
        a(f"s_branch K1_W1_{tag}")
        a.label(f"K1_W0_{tag}")
        a("s_waitcnt vmcnt(0) lgkmcnt(0)")
        a.label(f"K1_W1_{tag}")
        a("s_barrier")
        reads(0,0)
        a(f"s_cmp_ge_u32 s{sStep}, 7")
        a(f"s_cbranch_scc1 K1_NODMA_{tag}")
        dma(f"s{sCur}")
        a.label(f"K1_NODMA_{tag}")
        mfmas(1,vmode)
        a(f"s_add_u32 s{sCur}, s{sCur}, s{sDelta}")
        a(f"s_add_u32 s{sStep}, s{sStep}, 1")
        a(f"s_branch K1_LOOP_{tag}")
        a.label(f"K1_LAST_{tag}")
        a("s_waitcnt lgkmcnt(0)")
        mfmas(1,vmode)
        a.nop(16)

    a("s_cmp_eq_u32 s21, 2")
    a("s_cbranch_scc1 K1_VPATH")
    a("v_lshrrev_b32 v4, 5, v1")
    a("s_lshl_b32 s30, s23, 5")
    a("s_lshl_b32 s31, s18, 4")
    a("s_add_u32 s30, s30, s31")
    a("v_add_u32 v2, s30, v4")
    a("v_and_b32 v3, 31, v1")
    a("v_lshlrev_b32 v8, 4, v3")
    a("v_lshlrev_b32 v9, 3, v3")
    a("v_add_u32 v9, 1024, v9")
    for nt in range(2):
        for rq in range(4):
            o=56+nt*4+rq
            a(f"v_add_u32 v5, {nt*8+rq*2}, v2")
            a("v_mul_u32_u24 v6, 13108, v5")
            a("v_lshrrev_b32 v6, 16, v6")
            a("v_mul_u32_u24 v7, 5, v6")
            a("v_sub_u32 v5, v5, v7")
            a("v_lshrrev_b32 v7, 1, v5")
            a("v_lshlrev_b32 v7, 9, v7")
            a("v_and_b32 v22, 1, v5")
            a("v_lshlrev_b32 v22, 3, v22")
            a("v_add3_u32 v7, v7, v22, v8")
            a("v_cmp_eq_u32 vcc, 4, v5")
            a(f"v_mul_lo_u32 v6, v6, s{sHS}")
            a("s_nop 0")
            a("v_cndmask_b32 v7, v7, v9, vcc")
            a(f"v_add_u32 v{o}, v6, v7")
    mainloop(False,"QK")
    a("s_cmp_eq_u32 s21, 0")
    a("s_cbranch_scc0 K1_NOSCALE")
    a(f"s_mov_b32 s47, {f32bits(QSCALE)}")
    for i in range(64): a(f"v_mul_f32 v{64+i}, s47, v{64+i}")
    a.label("K1_NOSCALE")
    k=0
    for mt in range(2):
        for nt in range(2):
            for rq in range(4):
                r=acc(mt,nt)+rq*4
                t=24+2*(k%8); k+=1
                a(f"v_cvt_pk_bf16_f32 v{t}, v{r}, v{r+1}")
                a(f"v_cvt_pk_bf16_f32 v{t+1}, v{r+2}, v{r+3}")
                a(f"buffer_store_dwordx2 v[{t}:{t+1}], v{56+nt*4+rq}, s[{SO}:{SO+3}], s{33+mt} offen")
    a("s_endpgm")
    a.label("K1_VPATH")
    a("v_and_b32 v3, 31, v1")
    a("s_lshl_b32 s30, s23, 7")
    a("s_lshl_b32 s31, s18, 6")
    a("s_add_u32 s30, s30, s31")
    a("v_add_u32 v2, s30, v3")
    a("v_lshrrev_b32 v4, 5, v1")
    a("v_mul_u32_u24 v4, 320, v4")
    a("v_add_u32 v4, 1280, v4")
    for nt in range(2):
        a(f"v_add_u32 v5, {32*nt}, v2")
        a("v_mul_u32_u24 v6, 3277, v5")
        a("v_lshrrev_b32 v6, 16, v6")
        a("v_mul_u32_u24 v7, 20, v6")
        a("v_sub_u32 v5, v5, v7")
        a("v_lshlrev_b32 v5, 4, v5")
        a(f"v_mul_lo_u32 v6, v6, s{sHS}")
        a(f"v_add3_u32 v{56+nt}, v6, v5, v4")
    mainloop(True,"V")
    k=0
    for mt in range(2):
        for nt in range(2):
            for g in range(2):
                r=acc(mt,nt)+g*8
                t=24+4*(k%8); k+=1
                for q in range(4):
                    a(f"v_cvt_pk_bf16_f32 v{t+q}, v{r+2*q}, v{r+2*q+1}")
                a(f"buffer_store_dwordx4 v[{t}:{t+3}], v{56+nt}, s[{SO}:{SO+3}], s{33+mt} offen offset:{g*640}")
    a("s_endpgm")

    a.label("K1_SPARE")
    a("s_lshl_b32 s30, s30, 1")
    a("s_add_u32 s30, s30, s31")
    a("s_sub_u32 s19, s30, 30")
    a("s_load_dwordx2 s[54:55], s[0:1], 16")
    a("s_load_dwordx4 s[44:47], s[0:1], 40")
    a("s_waitcnt lgkmcnt(0)")
    srd(a,4,36,37,S*D*2)
    srd(a,8,46,47,D*2)
    srd(a,12,42,43,WS_END)
    srd(a,20,54,55,D*D*2)
    srd(a,24,44,45,D*D*2)
    a("v_lshlrev_b32 v2, 4, v1")
    a("s_mul_i32 s30, s16, 5120")
    a("v_add_u32 v2, s30, v2")
    for si in range(3):
        lab=f"K1_SL{si}"
        a(f"s_add_u32 s31, s19, {16*si}")
        if si==2:
            a("s_cmp_ge_u32 s31, 40")
            a(f"s_cbranch_scc1 {lab}_SKIP")
        a("s_cmp_ge_u32 s31, 20")
        a("s_cselect_b32 s28, s24, s20")
        a("s_cselect_b32 s29, s25, s21")
        a("s_cselect_b32 s33, 20, 0")
        a("s_sub_u32 s33, s31, s33")
        a("s_mul_i32 s33, s33, 40960")
        a("s_mov_b32 s48, s28")
        a("s_mov_b32 s49, s29")
        a(f"s_mov_b32 s50, {D*D*2}")
        a("s_mov_b32 s51, 0x20000")
        a(f"s_add_u32 m0, s30, {si*40960}")
        a("s_nop 0")
        for q in range(4):
            a(f"buffer_load_dwordx4 v2, s[48:51], s33 offen offset:{q*1024} lds")
        a(f"s_add_u32 m0, s30, {si*40960+4096}")
        a("s_add_u32 s33, s33, 4096")
        a("buffer_load_dwordx4 v2, s[48:51], s33 offen lds")
        if si==2: a.label(f"{lab}_SKIP")
    a("v_lshrrev_b32 v3, 3, v1")
    a("s_lshl_b32 s30, s19, 7")
    a("s_lshl_b32 s31, s16, 4")
    a("s_add_u32 s30, s30, s31")
    a("v_add_u32 v3, s30, v3")
    a("v_and_b32 v4, 7, v1")
    a("v_lshlrev_b32 v4, 4, v4")
    a("v_mul_u32_u24 v5, 1280, v3")
    a("v_add_u32 v5, v5, v4")
    a("v_add_u32 v6, 10240, v5")
    for cs in range(10):
        a(f"buffer_load_dwordx4 v[{16+4*cs}:{19+4*cs}], v4, s[8:11], 0 offen offset:{cs*128}")
    for rg in range(2):
        for cs in range(10):
            b=56+rg*40+4*cs
            a(f"buffer_load_dwordx4 v[{b}:{b+3}], v{5+rg}, s[4:7], 0 offen offset:{cs*128}")
    a("s_waitcnt vmcnt(0)")
    for rg in range(2):
        a(f"v_mov_b32 v{8+rg}, 0")
        for cs in range(10):
            for q in range(4):
                a(f"v_dot2_f32_bf16 v{8+rg}, v{56+rg*40+4*cs+q}, v{16+4*cs+q}, v{8+rg}")
    a("s_nop 1")
    for rg in range(2):
        r=8+rg
        a(f"v_add_f32_dpp v{r}, v{r}, v{r} quad_perm:[1,0,3,2] row_mask:0xf bank_mask:0xf")
        a("s_nop 1")
        a(f"v_add_f32_dpp v{r}, v{r}, v{r} quad_perm:[2,3,0,1] row_mask:0xf bank_mask:0xf")
        a("s_nop 1")
        a(f"v_add_f32_dpp v{r}, v{r}, v{r} row_half_mirror row_mask:0xf bank_mask:0xf")
        a("s_nop 1")
        a(f"v_cvt_pk_bf16_f32 v{r}, v{r}, 0")
        a(f"v_lshlrev_b32 v{r}, 16, v{r}")
        a(f"v_mul_f32 v10, {f32bits(-1.4426950408889634)}, v{r}")
        a("v_exp_f32 v10, v10")
        a("s_nop 0")
        a("v_add_f32 v10, 1.0, v10")
        a("v_rcp_f32 v10, v10")
        a("s_nop 0")
        a("v_cvt_pk_bf16_f32 v10, v10, 0")
        a("v_lshlrev_b32 v10, 16, v10")
        a("v_sub_f32 v11, 1.0, v10")
        a("v_cvt_pk_bf16_f32 v11, v11, 0")
        a("v_lshlrev_b32 v11, 16, v11")
        a(f"v_add_u32 v12, {8*rg}, v3")
        a("v_lshlrev_b32 v12, 2, v12")
        a("v_and_b32 v13, 7, v1")
        a("v_cmp_eq_u32 vcc, 0, v13")
        a("s_and_saveexec_b64 s[52:53], vcc")
        a(f"buffer_store_dword v10, v12, s[12:15], 0 offen offset:0")
        a(f"v_add_u32 v12, {OFF_OMG}, v12")
        a(f"buffer_store_dword v11, v12, s[12:15], 0 offen")
        a("s_mov_b64 exec, s[52:53]")
    a("s_barrier")
    a("v_lshrrev_b32 v2, 4, v1")
    a("v_lshlrev_b32 v2, 3, v2")
    a("v_bfe_u32 v3, v1, 2, 2")
    a("v_add_u32 v2, v2, v3")
    a("v_mul_u32_u24 v2, 1280, v2")
    a("v_and_b32 v3, 3, v1")
    a("v_lshlrev_b32 v3, 3, v3")
    a("v_add_u32 v2, v2, v3")
    a("s_mul_i32 s30, s16, 160")
    a("v_add_u32 v2, s30, v2")
    a("v_lshlrev_b32 v4, 4, v1")
    for si in range(3):
        lab=f"K1_TR{si}"
        a(f"s_add_u32 s31, s19, {16*si}")
        if si==2:
            a("s_cmp_ge_u32 s31, 40")
            a(f"s_cbranch_scc1 K1_END")
        for q in range(5):
            for u in range(2):
                a(f"ds_read_b64_tr_b16 v[{16+4*q+2*u}:{17+4*q+2*u}], v2 offset:{q*32+u*5120}")
        a("v_add_u32 v2, 40960, v2")
        a("s_mul_i32 s33, s16, 200")
        a("s_add_u32 s33, s33, s31")
        a("s_lshl_b32 s33, s33, 10")
        a(f"s_add_u32 s33, s33, {OFF_WO}")
        a("s_waitcnt lgkmcnt(0)")
        for q in range(5):
            a(f"buffer_store_dwordx4 v[{16+4*q}:{19+4*q}], v4, s[12:15], s33 offen")
            if q<4: a(f"s_add_u32 s33, s33, {40*1024}")
        a("s_nop 1")
    a.label("K1_END")
    a("s_endpgm")
    return a, name, kernel_desc(name,136,60)


K2_LDS=163840
def band_mask(r, prev):
    m=0
    for l in range(64):
        q=l&31; hh=l>>5
        rho=8*(r>>2)+4*hh+(r&3)
        ok = (rho>=q+25) if prev else (q-7<=rho<=q)
        if ok: m|=1<<l
    return m

def gen_k2():
    a=Asm(); name="attn_kernel"
    kernel_header(a,name)
    SKV,SWS=4,8
    SA,SB,O=16,32,48
    Q1,Q2=64,68
    K1=[72,76]; K2=[80,84]; V0=[88,96]; V1=[92,100]; P=104
    aK1,aK2,aV=2,3,4
    QA1,QA2,Kc1,Kc2,Kp1,Kp2,Vc0,Vc1,Vp1,Pp=112,116,120,124,128,132,136,140,144,148
    vG,vOMG=152,153
    ONES=0x3F803F80
    a("s_cmp_ge_u32 s2, 256")
    a("s_cbranch_scc1 K2_END")
    a("s_load_dwordx2 s[42:43], s[0:1], 72")
    a("v_and_b32 v1, 63, v0")
    a("v_lshrrev_b32 v5, 6, v0")
    a("s_and_b32 s30, s2, 7")
    a("v_readfirstlane_b32 s16, v5")
    a("s_lshr_b32 s31, s2, 3")
    a("s_lshr_b32 s17, s31, 3")
    a("s_lshl_b32 s30, s30, 2")
    a("s_add_u32 s17, s17, s30")
    a("s_and_b32 s18, s31, 7")
    a("s_mov_b32 s20, 0x000FFFFF")
    a("s_mov_b32 s21, 0x000FFFFF")
    a("s_mov_b32 s22, -1")
    a("s_mov_b32 s23, 0")
    a(f"v_lshlrev_b32 v{aK1}, 4, v1")
    a("v_and_b32 v5, 31, v1")
    a("v_lshrrev_b32 v6, 5, v1")
    a(f"v_lshlrev_b32 v{aK2}, 3, v5")
    a(f"v_add_u32 v{aK2}, 1024, v{aK2}")
    a(f"v_mul_u32_u24 v{aV}, 320, v6")
    a("v_lshlrev_b32 v7, 4, v5")
    a(f"v_add3_u32 v{aV}, v{aV}, v7, 0")
    a(f"v_add_u32 v{aV}, 1280, v{aV}")
    a("s_waitcnt lgkmcnt(0)")
    a("s_mul_i32 s30, s17, 163840")
    a(f"s_add_u32 s30, s30, {OFF_KVB}")
    a("s_add_u32 s4, s42, s30")
    a("s_addc_u32 s5, s43, 0")
    a("s_mov_b32 s6, 163840")
    a("s_mov_b32 s7, 0x20000")
    srd(a,SWS,42,43,WS_END)
    a("s_lshl_b32 s24, s16, 10")
    a(f"v_add_u32 v7, s24, v{aK1}")
    def kvdma(i):
        a(f"s_add_u32 m0, s24, {i*8192}")
        a(f"s_mov_b32 s25, {i*8192}")
        a(f"buffer_load_dwordx4 v7, s[{SKV}:{SKV+3}], s25 offen lds")
    for i in range(4): kvdma(i)
    a("s_lshl_b32 s26, s18, 3")
    a("s_add_u32 s26, s26, s16")
    a("s_lshl_b32 s27, s17, 6")
    a("s_add_u32 s28, s27, s26")
    a("s_mul_i32 s28, s28, 1280")
    a(f"s_add_u32 s28, s28, {OFF_QB}")
    for r in (Q2,Q2+1,Q2+2,Q2+3,QA2,QA2+1,QA2+2,QA2+3,Kc2+2,Kc2+3,Kp2+2,Kp2+3): a(f"v_mov_b32 v{r}, 0")
    for r in list(range(Vc0,Vc0+12))+list(range(88,104)): a(f"v_mov_b32 v{r}, {hex(ONES)}")
    for b in range(2):
        a(f"v_mov_b32 v{K2[b]+2}, {hex(ONES)}")
        a(f"v_mov_b32 v{K2[b]+3}, 0x3F80")
    a(f"buffer_load_dwordx4 v[{Q1}:{Q1+3}], v{aK1}, s[{SWS}:{SWS+3}], s28 offen")
    a("s_mov_b64 exec, s[22:23]")
    a(f"buffer_load_dwordx2 v[{Q2}:{Q2+1}], v{aK2}, s[{SWS}:{SWS+3}], s28 offen")
    a("s_mov_b64 exec, -1")
    a("s_lshr_b32 s29, s16, 2")
    a("s_and_b32 s33, s16, 3")
    a("s_lshl_b32 s34, s18, 2")
    a("s_add_u32 s33, s33, s34")
    a("s_lshl_b32 s34, s29, 5")
    a("s_add_u32 s34, s34, s33")
    a("s_add_u32 s35, s27, s34")
    a("s_mul_i32 s36, s35, 1280")
    a(f"s_add_u32 s36, s36, {OFF_QA}")
    a("s_mul_i32 s37, s35, 2560")
    a(f"s_add_u32 s37, s37, {OFF_KVA}")
    a("s_cmp_eq_u32 s33, 0")
    a("s_cselect_b32 s38, 0, 2560")
    a("s_sub_u32 s38, s37, s38")
    a(f"buffer_load_dwordx4 v[{QA1}:{QA1+3}], v{aK1}, s[{SWS}:{SWS+3}], s36 offen")
    a(f"buffer_load_dwordx4 v[{Kc1}:{Kc1+3}], v{aK1}, s[{SWS}:{SWS+3}], s37 offen")
    a(f"buffer_load_dwordx2 v[{Kc2}:{Kc2+1}], v{aK2}, s[{SWS}:{SWS+3}], s37 offen")
    a(f"buffer_load_dwordx4 v[{Kp1}:{Kp1+3}], v{aK1}, s[{SWS}:{SWS+3}], s38 offen")
    a(f"buffer_load_dwordx2 v[{Kp2}:{Kp2+1}], v{aK2}, s[{SWS}:{SWS+3}], s38 offen")
    a("s_mov_b64 exec, s[22:23]")
    a(f"buffer_load_dwordx2 v[{QA2}:{QA2+1}], v{aK2}, s[{SWS}:{SWS+3}], s36 offen")
    a("s_mov_b64 exec, s[20:21]")
    a(f"buffer_load_dwordx4 v[{Vc0}:{Vc0+3}], v{aV}, s[{SWS}:{SWS+3}], s37 offen")
    a(f"buffer_load_dwordx4 v[{Vc1}:{Vc1+3}], v{aV}, s[{SWS}:{SWS+3}], s37 offen offset:640")
    a(f"buffer_load_dwordx4 v[{Vp1}:{Vp1+3}], v{aV}, s[{SWS}:{SWS+3}], s38 offen offset:640")
    a("s_mov_b64 exec, -1")
    a("s_lshl_b32 s39, s33, 6")
    a("s_add_u32 s39, s39, s29")
    a("v_lshlrev_b32 v8, 1, v5")
    a("v_add_u32 v8, s39, v8")
    a("s_lshl_b32 s39, s26, 5")
    a("v_add_u32 v9, s39, v5")
    a("v_lshlrev_b32 v10, 2, v8")
    a("v_lshlrev_b32 v11, 2, v9")
    a(f"buffer_load_dword v{vG}, v10, s[{SWS}:{SWS+3}], 0 offen")
    a(f"buffer_load_dword v{vOMG}, v11, s[{SWS}:{SWS+3}], 0 offen offset:0")
    a.lines.pop()
    a(f"v_add_u32 v11, {OFF_OMG}, v11")
    a(f"buffer_load_dword v{vOMG}, v11, s[{SWS}:{SWS+3}], 0 offen")
    for i in range(4,20): kvdma(i)
    def ooff(dst, tok, kb_sgpr_setup):
        kb_sgpr_setup()
        a("v_lshlrev_b32 v14, 2, v6")
        a("v_add_u32 v14, s39, v14")
        a("v_lshrrev_b32 v15, 3, v14")
        a("v_lshlrev_b32 v15, 8, v15")
        a("v_and_b32 v14, 4, v14")
        a("v_lshlrev_b32 v14, 1, v14")
        a("v_add_u32 v15, v15, v14")
        a(f"v_lshrrev_b32 v14, 4, v{tok}")
        a("v_mul_u32_u24 v14, 40960, v14")
        a("v_add_u32 v15, v15, v14")
        a(f"v_and_b32 v14, 15, v{tok}")
        a("v_lshlrev_b32 v14, 4, v14")
        a("v_add_u32 v15, v15, v14")
        a(f"v_add_u32 v{dst}, {OFF_O}, v15")
    ooff(12,8,lambda: a("s_mul_i32 s39, s17, 20"))
    def kbB():
        a("s_mul_i32 s39, s17, 20"); a("s_add_u32 s39, s39, 640")
    ooff(13,9,kbB)

    def mfma(d,A,B,C):
        c = "0" if C is None else f"v[{C}:{C+15}]"
        a(f"v_mfma_f32_32x32x16_bf16 v[{d}:{d+15}], v[{A}:{A+3}], v[{B}:{B+3}], {c}")

    def epilogue(vscale_src, voff, tagl):
        a(f"v_mov_b32 v14, v{O+8}")
        a(f"v_mov_b32 v15, v{O+8}")
        a("s_nop 1")
        a("v_permlane32_swap_b32 v14, v15")
        a("s_nop 1")
        a("v_rcp_f32 v14, v15")
        a("s_nop 0")
        a(f"v_mul_f32 v14, v14, v{vscale_src}")
        for i in range(12): a(f"v_mul_f32 v{O+i}, v14, v{O+i}")
        for rq in range(3):
            a(f"v_cvt_pk_bf16_f32 v{P+2*rq}, v{O+4*rq}, v{O+4*rq+1}")
            a(f"v_cvt_pk_bf16_f32 v{P+2*rq+1}, v{O+4*rq+2}, v{O+4*rq+3}")
        for rq in range(3):
            if rq==2: a("s_mov_b64 exec, s[22:23]")
            a(f"buffer_store_dwordx2 v[{P+2*rq}:{P+2*rq+1}], v{voff}, s[{SWS}:{SWS+3}], 0 offen offset:{256*rq}")
        a("s_mov_b64 exec, -1")

    a("s_waitcnt vmcnt(16)")
    mfma(SA,Kc1,QA1,None); mfma(SA,Kc2,QA2,SA)
    mfma(SB,Kp1,QA1,None); mfma(SB,Kp2,QA2,SB)
    a("v_mov_b32 v14, 0xff800000")
    a.nop(12)
    k=0
    for r in range(16):
        m=band_mask(r,False); sp=44+2*(k%4); k+=1
        a(f"s_mov_b32 s{sp}, {hex(m&0xffffffff)}"); a(f"s_mov_b32 s{sp+1}, {hex(m>>32)}")
        a(f"v_cndmask_b32 v{SA+r}, v14, v{SA+r}, s[{sp}:{sp+1}]")
    a("s_cmp_eq_u32 s33, 0")
    a("s_cselect_b32 s52, 0, -1")
    for r in range(12,16):
        m=band_mask(r,True); sp=44+2*(k%4); k+=1
        a(f"s_and_b32 s{sp}, s52, {hex(m&0xffffffff)}"); a(f"s_and_b32 s{sp+1}, s52, {hex(m>>32)}")
        a(f"v_cndmask_b32 v{SB+r}, v14, v{SB+r}, s[{sp}:{sp+1}]")
    vals=[SA+r for r in range(16)]+[SB+r for r in range(12,16)]
    a(f"v_max3_f32 v15, v{vals[0]}, v{vals[1]}, v{vals[2]}")
    i=3
    while i+1<len(vals):
        a(f"v_max3_f32 v15, v15, v{vals[i]}, v{vals[i+1]}"); i+=2
    a(f"v_max_f32 v15, v15, v{vals[19]}")
    a("v_mov_b32 v14, v15")
    a("s_nop 1")
    a("v_permlane32_swap_b32 v14, v15")
    a("s_nop 1")
    a("v_max_f32 v15, v14, v15")
    for r in vals: a(f"v_sub_f32 v{r}, v{r}, v15")
    for r in vals: a(f"v_exp_f32 v{r}, v{r}")
    a("s_nop 0")
    for q in range(8): a(f"v_cvt_pk_bf16_f32 v{P+q}, v{SA+2*q}, v{SA+2*q+1}")
    a(f"v_mov_b32 v{Pp}, 0"); a(f"v_mov_b32 v{Pp+1}, 0")
    a(f"v_cvt_pk_bf16_f32 v{Pp+2}, v{SB+12}, v{SB+13}")
    a(f"v_cvt_pk_bf16_f32 v{Pp+3}, v{SB+14}, v{SB+15}")
    a("s_nop 1")
    mfma(O,Vc0,P,None); mfma(O,Vc1,P+4,O); mfma(O,Vp1,Pp,O)
    a.nop(12)
    epilogue(vG,12,"A")

    a("s_barrier")
    def rdK(t,off):
        b=t&1
        a(f"ds_read_b128 v[{K1[b]}:{K1[b]+3}], v{aK1} offset:{off}")
        a(f"ds_read_b64 v[{K2[b]}:{K2[b]+1}], v{aK2} offset:{off}")
    def rdV(t,off):
        b=t&1
        a("s_mov_b64 exec, s[20:21]")
        a(f"ds_read_b128 v[{V0[b]}:{V0[b]+3}], v{aV} offset:{off}")
        a(f"ds_read_b128 v[{V1[b]}:{V1[b]+3}], v{aV} offset:{off+640}")
        a("s_mov_b64 exec, -1")
    rdK(0,0); rdK(1,2560); rdV(0,0)
    a("s_waitcnt lgkmcnt(0)")
    mfma(SA,K1[0],Q1,None); mfma(SA,K2[0],Q2,SA)
    a.nop(13)
    a(f"v_max3_f32 v15, v{SA}, v{SA+1}, v{SA+2}")
    for i in range(3,15,2): a(f"v_max3_f32 v15, v15, v{SA+i}, v{SA+i+1}")
    a(f"v_max_f32 v15, v15, v{SA+15}")
    a("v_mov_b32 v14, v15")
    a("s_nop 1")
    a("v_permlane32_swap_b32 v14, v15")
    a("s_nop 1")
    a("v_max_f32 v15, v14, v15")
    a("v_sub_f32 v15, 0, v15")
    a("v_cvt_pk_bf16_f32 v15, v15, 0")
    a("s_mov_b64 exec, s[22:23]")
    a(f"v_mov_b32 v{Q2+2}, v15")
    a("s_mov_b64 exec, -1")
    mfma(SA,K1[0],Q1,None); mfma(SA,K2[0],Q2,SA)
    for i in range(16): a(f"v_mov_b32 v{O+i}, 0")

    def tile(t, rel, last_k, last_s):
        p=t&1
        Scur=[SA,SB][p]; Snext=[SA,SB][1-p]
        def ex(i0):
            for j in range(4): a(f"v_exp_f32 v{Scur+i0+j}, v{Scur+i0+j}")
        def cv(i0):
            a(f"v_cvt_pk_bf16_f32 v{P+i0//2}, v{Scur+i0}, v{Scur+i0+1}")
            a(f"v_cvt_pk_bf16_f32 v{P+i0//2+1}, v{Scur+i0+2}, v{Scur+i0+3}")
        a("s_waitcnt lgkmcnt(0)")
        if not last_s: mfma(Snext,K1[1-p],Q1,None)
        if not last_k: rdK(t,(rel+2)*2560)
        ex(0)
        if not last_s:
            mfma(Snext,K2[1-p],Q2,Snext)
            rdV(t+1,(rel+1)*2560)
        cv(0); ex(4); cv(4)
        ex(8)
        mfma(O,V0[p],P,O)
        cv(8); ex(12); cv(12)
        a("s_nop 1")
        mfma(O,V1[p],P+4,O)

    a("s_mov_b32 s40, 0")
    a.label("K2_LOOP")
    for t in range(8): tile(t,t,False,False)
    for r in (aK1,aK2,aV): a(f"v_add_u32 v{r}, {8*2560}, v{r}")
    a("s_add_u32 s40, s40, 1")
    a("s_cmp_gt_u32 s40, 2")
    a("s_cbranch_scc1 K2_NOBAR")
    a("s_cmp_eq_u32 s40, 1")
    a("s_cbranch_scc1 K2_B1")
    a("s_waitcnt vmcnt(0)")
    a("s_branch K2_B2")
    a.label("K2_B1")
    a("s_waitcnt vmcnt(14)")
    a.label("K2_B2")
    a("s_barrier")
    a.label("K2_NOBAR")
    a("s_cmp_lt_u32 s40, 7")
    a("s_cbranch_scc1 K2_LOOP")
    for t in range(8): tile(t,t,t>=6,t>=7)
    a.nop(13)
    epilogue(vOMG,13,"B")
    a.label("K2_END")
    a("s_endpgm")
    return a, name, kernel_desc(name,160,64)


K3_RS=336
K3_LDS=4*64*K3_RS
def gen_k3(name):
    a=Asm()
    kernel_header(a,name)
    SWS,SOUT=4,8
    DEPTH=6
    def buf(s): return 16+(s%DEPTH)*36
    a("s_cmp_ge_u32 s2, 256")
    a("s_cbranch_scc1 K3_END")
    a("s_load_dwordx2 s[42:43], s[0:1], 72")
    a("s_load_dwordx2 s[40:41], s[0:1], 56")
    a("v_and_b32 v1, 63, v0")
    a("v_lshrrev_b32 v5, 6, v0")
    a("s_and_b32 s30, s2, 7")
    a("v_readfirstlane_b32 s16, v5")
    a("s_lshr_b32 s31, s2, 3")
    a("s_lshr_b32 s17, s31, 3")
    a("s_lshl_b32 s30, s30, 2")
    a("s_add_u32 s17, s17, s30")
    a("s_and_b32 s18, s31, 7")
    a("s_mul_i32 s19, s16, 10240")
    a("v_lshlrev_b32 v2, 4, v1")
    a("v_add_u32 v2, s19, v2")
    a("v_add_u32 v3, 4096, v2")
    a("v_add_u32 v4, 8192, v2")
    a("s_mul_i32 s20, s17, 163840")
    a(f"s_add_u32 s20, s20, {OFF_O}")
    for mt in range(1,4): a(f"s_add_u32 s{20+mt}, s20, {mt*40960}")
    a("s_mul_i32 s24, s18, 204800")
    a(f"s_add_u32 s24, s24, {OFF_WO}")
    for nt in range(1,5): a(f"s_add_u32 s{24+nt}, s24, {nt*40960}")
    a("s_waitcnt lgkmcnt(0)")
    srd(a,SWS,42,43,WS_END)
    srd(a,SOUT,40,41,S*D*2)
    def loads(s):
        b=buf(s); vo=2+s//4; io=(s%4)*1024
        for mt in range(4):
            a(f"buffer_load_dwordx4 v[{b+4*mt}:{b+4*mt+3}], v{vo}, s[{SWS}:{SWS+3}], s{20+mt} offen offset:{io}")
        for nt in range(5):
            a(f"buffer_load_dwordx4 v[{b+16+4*nt}:{b+16+4*nt+3}], v{vo}, s[{SWS}:{SWS+3}], s{24+nt} offen offset:{io}")
    for s_ in range(DEPTH): loads(s_)
    for i in range(80): a(f"v_accvgpr_write_b32 a{i}, 0")
    a("v_and_b32 v5, 15, v1")
    a(f"v_mul_u32_u24 v5, {K3_RS}, v5")
    a("v_lshrrev_b32 v6, 4, v1")
    a("v_lshlrev_b32 v6, 4, v6")
    a(f"s_mul_i32 s19, s16, {64*K3_RS}")
    a("v_add3_u32 v5, v5, v6, s19")
    for s_ in range(10):
        later=min(s_+DEPTH-1,9)-s_
        a(f"s_waitcnt vmcnt({9*later})")
        b=buf(s_)
        for mt in range(4):
            for nt in range(5):
                d=(mt*5+nt)*4
                a(f"v_mfma_f32_16x16x32_bf16 a[{d}:{d+3}], v[{b+16+4*nt}:{b+16+4*nt+3}], v[{b+4*mt}:{b+4*mt+3}], a[{d}:{d+3}]")
        if s_+DEPTH<=9: loads(s_+DEPTH)
    a.nop(8)
    for mt in range(4):
        for nt in range(5):
            d=(mt*5+nt)*4
            a(f"ds_write_b128 v5, a[{d}:{d+3}] offset:{mt*16*K3_RS+nt*64}")
    a("s_waitcnt lgkmcnt(0)")
    a("s_barrier")
    a("s_lshl_b32 s19, s17, 6")
    a("s_mul_i32 s19, s19, 1280")
    a("s_mul_i32 s30, s18, 160")
    a("s_add_u32 s19, s19, s30")
    for rnd in range(3):
        if rnd==2:
            a("s_cmp_ge_u32 s16, 2")
            a("s_cbranch_scc1 K3_END")
        a(f"v_add_u32 v6, {256*rnd}, v0")
        a("v_mul_u32_u24 v7, 6554, v6")
        a("v_lshrrev_b32 v7, 16, v7")
        a("v_mul_u32_u24 v8, 10, v7")
        a("v_sub_u32 v8, v6, v8")
        a(f"v_mul_u32_u24 v9, {K3_RS}, v7")
        a("v_lshlrev_b32 v10, 5, v8")
        a("v_add_u32 v9, v9, v10")
        for p in range(4):
            for hlf in range(2):
                off=p*64*K3_RS+hlf*16
                a(f"ds_read_b128 v[{16+p*8+hlf*4}:{19+p*8+hlf*4}], v9 offset:{off}")
        a("v_mul_u32_u24 v7, 1280, v7")
        a("v_lshlrev_b32 v8, 4, v8")
        a("v_add_u32 v7, v7, v8")
        a("s_waitcnt lgkmcnt(0)")
        for i in range(8):
            a(f"v_add_f32 v{16+i}, v{16+i}, v{24+i}")
            a(f"v_add_f32 v{32+i}, v{32+i}, v{40+i}")
        for i in range(8): a(f"v_add_f32 v{16+i}, v{16+i}, v{32+i}")
        for i in range(4): a(f"v_cvt_pk_bf16_f32 v{48+4*rnd+i}, v{16+2*i}, v{17+2*i}")
        a(f"buffer_store_dwordx4 v[{48+4*rnd}:{51+4*rnd}], v7, s[{SOUT}:{SOUT+3}], s19 offen")
    a.label("K3_END")
    a("s_endpgm")
    return a, name, kernel_desc(name,256+80,48,accum=256)

def build(kernels, launches, path):
    hdr=f"""; gated_mix: sliding-local-dilated (A) + full softmax MHA (B), gated mix.  3 launches.
"""
    for l in launches: hdr+=l+"\n"
    hdr+='.amdgcn_target "amdgcn-amd-amdhsa--gfx950"\n.text\n'
    body=""
    for a,name,desc in kernels:
        errs=a.check(name)
        for e in errs: print("HAZARD",e,file=sys.stderr)
        body+=a.text()+desc
    open(path,"w").write(hdr+body)

if __name__=="__main__":
    ks=[gen_k1(),gen_k2(),gen_k3("oproj_kernel")]
    launches=[f"; @launch kernel=qkv_kernel grid=(256,1,1) block=(512,1,1) lds={K1_LDS}",
              f"; @launch kernel=attn_kernel grid=(256,1,1) block=(512,1,1) lds={K2_LDS}",
              f"; @launch kernel=oproj_kernel grid=(256,1,1) block=(256,1,1) lds={K3_LDS}"]
    out=sys.argv[1] if len(sys.argv)>1 else "k.s"
    build(ks,launches,out)
```

```python
import sys, math, struct
from asmgen import Asm

S=2048; D=640; H=32; DH=20
NAME="gated_mix__sliding_local_dilated__softmax_full_mha__prompt"
OFF_G=0; OFF_OMG=8192
QIMG=32*64*1280; KVIMG=32*64*2560
OFF_QA=0x10000; OFF_QB=OFF_QA+QIMG; OFF_KVA=OFF_QB+QIMG; OFF_KVB=OFF_KVA+KVIMG
OFF_O=OFF_KVB+KVIMG; OIMG=128*40*1024
OFF_WO=OFF_O+OIMG; WOIMG=40*40*1024
WS_END=OFF_WO+WOIMG
QSCALE=(DH**-0.5)*1.4426950408889634
def f32bits(x): return struct.unpack("<I",struct.pack("<f",x))[0]

def srd(a, d, lo, hi, nbytes, off=0):
    if off:
        a(f"s_add_u32 s{d}, s{lo}, {off}")
        a(f"s_addc_u32 s{d+1}, s{hi}, 0")
    else:
        a(f"s_mov_b32 s{d}, s{lo}")
        a(f"s_mov_b32 s{d+1}, s{hi}")
    a(f"s_mov_b32 s{d+2}, {nbytes}")
    a(f"s_mov_b32 s{d+3}, 0x20000")

import os
PROF=int(os.environ.get("PROF","0"))
OFF_DBG=60<<20
STAMP_BASE=64
def stamp(a,i,real=False):
    if not PROF: return
    r=STAMP_BASE+2*i
    a(f"s_memtime s[{r}:{r+1}]" if not real else f"s_memrealtime s[{r}:{r+1}]")
    a("s_waitcnt lgkmcnt(0)")
def stamp_flush(a,kidx,n,wsptr=(42,43),allwaves=True):
    if not PROF: return
    a("s_mov_b64 exec, -1")
    a(f"s_add_u32 s96, s{wsptr[0]}, {OFF_DBG}")
    a(f"s_addc_u32 s97, s{wsptr[1]}, 0")
    a("s_mov_b32 s98, 0x1000000")
    a("s_mov_b32 s99, 0x20000")
    if kidx==1:
        a("s_lshl_b32 s95, s2, 2")
        a(f"s_add_u32 s95, s95, {kidx*2048}")
    else:
        a(f"s_add_u32 s95, s2, {kidx*256}")
        a("s_lshl_b32 s95, s95, 3")
    a("s_add_u32 s95, s95, s16")
    a("s_lshl_b32 s95, s95, 7")
    a("v_mov_b32 v250, 0")
    for i in range(n):
        a(f"v_mov_b32 v251, s{STAMP_BASE+2*i}")
        a(f"buffer_store_dword v251, v250, s[96:99], s95 offen offset:{4*i}")
        a("s_nop 1")

def gstamp_setup(a,kidx,wsptr=(42,43)):
    if not PROF: return
    a(f"s_add_u32 s96, s{wsptr[0]}, {OFF_DBG}")
    a(f"s_addc_u32 s97, s{wsptr[1]}, 0")
    a("s_mov_b32 s98, 0x1000000")
    a("s_mov_b32 s99, 0x20000")
    if kidx==1:
        a("s_lshl_b32 s95, s2, 2")
        a(f"s_add_u32 s95, s95, {kidx*2048}")
    else:
        a(f"s_add_u32 s95, s2, {kidx*256}")
        a("s_lshl_b32 s95, s95, 3")
    a("s_add_u32 s95, s95, s16")
    a("s_lshl_b32 s95, s95, 7")
    a("s_add_u32 s95, s95, 64")
    a("v_mov_b32 v250, 0")
def gstamp(a,cnt_sgpr):
    if not PROF: return
    a("s_memtime s[92:93]")
    a("s_waitcnt lgkmcnt(0)")
    a("v_mov_b32 v251, s92")
    a(f"s_lshl_b32 s94, s{cnt_sgpr}, 2")
    a("s_add_u32 s94, s94, s95")
    a("buffer_store_dword v251, v250, s[96:99], s94 offen")

def csel(a, dst, t, f):
    a(f"s_mov_b32 {dst}, {f}")
    a(f"s_cselect_b32 {dst}, {t}, {dst}")

def kernel_header(a, name):
    a(f".globl {name}")
    a(f".p2align 8")
    a(f".type {name},@function")
    a.label(name)

def kernel_desc(name, vgpr, sgpr, accum=None):
    if PROF:
        sgpr=102
        if accum is None: vgpr=256
    if accum is None: accum=(vgpr+3)//4*4
    return f""".section .rodata,"a"
.p2align 6
.amdhsa_kernel {name}
  .amdhsa_next_free_vgpr {vgpr}
  .amdhsa_next_free_sgpr {sgpr}
  .amdhsa_accum_offset {accum}
  .amdhsa_group_segment_fixed_size 0
  .amdhsa_kernarg_size 80
  .amdhsa_user_sgpr_count 2
  .amdhsa_user_sgpr_kernarg_segment_ptr 1
  .amdhsa_system_sgpr_workgroup_id_x 1
.end_amdhsa_kernel
.text
"""

K1_STAGE=49152
K1_LDS=3*K1_STAGE
def gen_k1():
    a=Asm(); name="qkv_kernel"
    kernel_header(a,name)
    SX,SW,SO=4,8,12
    sWv,sWm,sWn,sRb,sCbp,sSec,sBr,sCbpp=16,17,18,19,20,21,22,23
    sOffX,sOffW,sStep,sCur,sMX,sMW=24,25,26,27,28,29
    sT0,sT1,sDelta,sSo0,sSo1,sTS=30,31,32,33,34,35
    sHS,sScale=46,47
    sPrev=48
    vXo=10; vWo=14; aX=16; aW=20
    def Xf(b,mt): return 24+b*16+mt*4
    def Wf(b,nt): return 24+b*16+8+nt*4
    def acc(mt,nt): return 64+(mt*2+nt)*16
    a("s_cmp_ge_u32 s2, 256")
    a("s_cbranch_scc1 K1_END")
    stamp(a,0,True); stamp(a,1)
    a("s_load_dwordx4 s[36:39], s[0:1], 0")
    a("s_load_dwordx2 s[40:41], s[0:1], 32")
    a("s_load_dwordx2 s[42:43], s[0:1], 72")
    a("v_and_b32 v1, 63, v0")
    a("v_lshrrev_b32 v2, 6, v0")
    a("s_and_b32 s30, s2, 7")
    a("v_readfirstlane_b32 s16, v2")
    a("s_lshr_b32 s31, s2, 3")
    a("s_cmp_ge_u32 s31, 30")
    a("s_cbranch_scc1 K1_SPARE")
    a("s_mul_i32 s30, s30, 30")
    a("s_add_u32 s30, s30, s31")
    a("s_and_b32 s19, s30, 3")
    a("s_cmp_ge_u32 s30, 120")
    a("s_cselect_b32 s31, 120, 0")
    a("s_cselect_b32 s44, 4, 0")
    a("s_sub_u32 s30, s30, s31")
    a("s_add_u32 s19, s19, s44")
    a("s_lshr_b32 s20, s30, 2")
    a("s_cmp_ge_u32 s20, 15")
    a("s_cselect_b32 s22, 1, 0")
    a("s_cselect_b32 s31, 15, 0")
    a("s_sub_u32 s20, s20, s31")
    a("s_mov_b32 s21, 0")
    a("s_cmp_ge_u32 s20, 5")
    a("s_cselect_b32 s21, 1, s21")
    a("s_cmp_ge_u32 s20, 10")
    a("s_cselect_b32 s21, 2, s21")
    a("s_mul_i32 s31, s21, 5")
    a("s_sub_u32 s23, s20, s31")
    a("s_and_b32 s17, s16, 3")
    a("s_lshr_b32 s18, s16, 2")
    stamp(a,8)
    a("s_waitcnt lgkmcnt(0)")
    stamp(a,9)
    srd(a,SX,36,37,S*D*2)
    a("s_cmp_eq_u32 s22, 0")
    a("s_cselect_b32 s8, s38, s40")
    a("s_cselect_b32 s9, s39, s41")
    a(f"s_mov_b32 s10, {D*3*D*2}")
    a("s_mov_b32 s11, 0x20000")
    a("s_lshl_b32 s30, s19, 8")
    a("s_lshl_b32 s31, s16, 5")
    a("s_add_u32 s44, s30, s31")
    a("s_lshl_b32 s31, s17, 6")
    a("s_add_u32 s45, s30, s31")
    a("s_add_u32 s45, s45, s18")
    a("s_cmp_eq_u32 s22, 0")
    a("s_cselect_b32 s44, s45, s44")
    csel(a,"s45",2560,1280)
    a("s_mul_i32 s44, s44, 1280")
    a("v_lshrrev_b32 v2, 3, v1")
    a("v_mul_lo_u32 v2, v2, s45")
    a("v_add_u32 v2, s44, v2")
    a("v_and_b32 v3, 7, v1")
    a("v_lshrrev_b32 v4, 4, v1")
    a("v_xor_b32 v5, v3, v4")
    a("v_xor_b32 v6, 4, v5")
    a("v_lshlrev_b32 v5, 4, v5")
    a("v_lshlrev_b32 v6, 4, v6")
    a("s_lshl_b32 s45, s45, 3")
    a("s_sub_u32 s45, s45, 1024")
    for j in range(4):
        a(f"v_add_u32 v{vXo+j}, v2, v{5 if j%2==0 else 6}")
        if j>0:
            a(f"s_mul_i32 s30, s45, {j}")
            a(f"v_add_u32 v{vXo+j}, s30, v{vXo+j}")
    a("s_lshl_b32 s30, s16, 3")
    a("v_add_u32 v2, s30, v4")
    a("v_mul_u32_u24 v2, 3840, v2")
    a("v_and_b32 v3, 15, v1")
    a("v_lshlrev_b32 v5, 2, v4")
    a("v_xor_b32 v3, v3, v5")
    a("v_lshlrev_b32 v3, 4, v3")
    a("v_add_u32 v2, v2, v3")
    a("s_lshl_b32 s30, s20, 8")
    a(f"v_add_u32 v{vWo}, s30, v2")
    a(f"v_add_u32 v{vWo+1}, {4*3840-1024}, v{vWo}")
    a("s_lshl_b32 s28, s16, 12")
    a("s_lshl_b32 s29, s16, 11")
    a("s_add_u32 s29, s29, 32768")
    def dma(stage_sgpr_expr_off):
        a(f"s_add_u32 m0, {stage_sgpr_expr_off}, s28")
        a("s_nop 0")
        for j in range(4):
            a(f"buffer_load_dwordx4 v{vXo+j}, s[{SX}:{SX+3}], s{sOffX} offen offset:{j*1024} lds")
        a(f"s_add_u32 m0, {stage_sgpr_expr_off}, s29")
        a("s_nop 0")
        for j in range(2):
            a(f"buffer_load_dwordx4 v{vWo+j}, s[{SW}:{SW+3}], s{sOffW} offen offset:{j*1024} lds")
        a(f"s_add_u32 s{sOffX}, s{sOffX}, 128")
        a(f"s_add_u32 s{sOffW}, s{sOffW}, {64*3840}")
    a(f"s_mov_b32 s{sOffX}, 0")
    a(f"s_mov_b32 s{sOffW}, 0")
    stamp(a,10)
    a("s_mov_b32 s30, 0")
    dma("s30")
    stamp(a,11)
    a("v_and_b32 v2, 31, v1")
    a("s_lshl_b32 s30, s17, 6")
    a("v_add_u32 v3, s30, v2")
    a("v_lshlrev_b32 v3, 7, v3")
    a("v_lshrrev_b32 v4, 5, v1")
    a("v_bfe_u32 v5, v1, 1, 3")
    a("v_xor_b32 v5, v4, v5")
    a("v_lshlrev_b32 v5, 4, v5")
    a(f"v_add_u32 v{aX}, v3, v5")
    for ks in range(1,4):
        a(f"v_xor_b32 v{aX+ks}, {32*ks}, v{aX}")
    a("v_bfe_u32 v5, v1, 2, 2")
    a("v_lshlrev_b32 v6, 3, v4")
    a("v_add_u32 v6, v6, v5")
    a("v_lshlrev_b32 v6, 8, v6")
    a("v_bfe_u32 v7, v1, 4, 1")
    a("v_lshlrev_b32 v7, 1, v7")
    a("v_bfe_u32 v8, v1, 1, 1")
    a("v_add_u32 v7, v7, v8")
    a("s_lshl_b32 s30, s18, 3")
    a("v_add_u32 v7, s30, v7")
    a("v_lshlrev_b32 v5, 2, v5")
    a("v_xor_b32 v7, v7, v5")
    a("v_lshlrev_b32 v7, 4, v7")
    a("v_and_b32 v8, 1, v1")
    a("v_lshlrev_b32 v8, 3, v8")
    a("v_add3_u32 v6, v6, v7, v8")
    a(f"v_add_u32 v{aW}, 32768, v6")
    a(f"v_xor_b32 v{aW+1}, 64, v{aW}")
    a(f"s_mov_b32 s30, {K1_STAGE}")
    dma("s30")
    stamp(a,12)
    for i in range(64): a(f"v_mov_b32 v{64+i}, 0")
    a("s_cmp_eq_u32 s22, 0")
    csel(a,"s30",OFF_QA,OFF_QB)
    csel(a,"s31",OFF_KVA,OFF_KVB)
    a("s_cmp_eq_u32 s21, 0")
    a("s_cselect_b32 s30, s30, s31")
    csel(a,"s14",QIMG,KVIMG)
    csel(a,"s35",1280,2560)
    a("s_add_u32 s12, s42, s30")
    a("s_addc_u32 s13, s43, 0")
    a("s_mov_b32 s15, 0x20000")
    a("s_lshl_b32 s46, s35, 6")
    a("s_lshl_b32 s30, s19, 3")
    a("s_lshl_b32 s31, s17, 1")
    a("s_add_u32 s44, s30, s31")
    a("s_lshr_b32 s30, s17, 1")
    a("s_lshl_b32 s30, s30, 5")
    a("s_lshl_b32 s31, s19, 2")
    a("s_add_u32 s30, s30, s31")
    a("s_and_b32 s31, s17, 1")
    a("s_lshl_b32 s31, s31, 1")
    a("s_add_u32 s30, s30, s31")
    a("s_cmp_eq_u32 s22, 0")
    a("s_cselect_b32 s30, s30, s44")
    a("s_mul_i32 s33, s30, s35")
    a("s_add_u32 s34, s33, s35")

    def reads(b,ks):
        for mt in range(2):
            a(f"ds_read_b128 v[{Xf(b,mt)}:{Xf(b,mt)+3}], v{aX+ks} offset:{mt*4096}")
        for nt in range(2):
            for u in range(2):
                a(f"ds_read_b64_tr_b16 v[{Wf(b,nt)+2*u}:{Wf(b,nt)+2*u+1}], v{aW+nt} offset:{ks*4096+u*1024}")
    def mf(b,mt,nt,vmode):
        d=acc(mt,nt)
        A,B=(Xf(b,mt),Wf(b,nt)) if vmode else (Wf(b,nt),Xf(b,mt))
        a(f"v_mfma_f32_32x32x16_bf16 v[{d}:{d+15}], v[{A}:{A+3}], v[{B}:{B+3}], v[{d}:{d+15}]")
    def mfmas(b,vmode):
        for mt in range(2):
            for nt in range(2): mf(b,mt,nt,vmode)

    def dma1(kind,j,tag):
        lab=a.newlabel(f"K1_ND_{tag}")
        a(f"s_cbranch_vccz {lab}")
        if kind=="X":
            if j==0:
                a(f"s_add_u32 m0, s{sPrev}, s28")
                a("s_nop 0")
            a(f"buffer_load_dwordx4 v{vXo+j}, s[{SX}:{SX+3}], s{sOffX} offen offset:{j*1024} lds")
        else:
            if j==0:
                a(f"s_add_u32 m0, s{sPrev}, s29")
                a("s_nop 0")
            a(f"buffer_load_dwordx4 v{vWo+j}, s[{SW}:{SW+3}], s{sOffW} offen offset:{j*1024} lds")
            if j==1:
                a(f"s_add_u32 s{sOffX}, s{sOffX}, 128")
                a(f"s_add_u32 s{sOffW}, s{sOffW}, {64*3840}")
        a.label(lab)
    def mainloop(vmode,tag):
        stamp(a,2)
        a("s_waitcnt vmcnt(6)")
        a("s_barrier")
        stamp(a,3)
        reads(0,0)
        a(f"s_mov_b32 s{sStep}, 0")
        a(f"s_mov_b32 s{sCur}, 0")
        a(f"s_mov_b32 s{sPrev}, {2*K1_STAGE}")
        a.label(f"K1_LOOP_{tag}")
        a(f"s_cmp_le_u32 s{sStep}, 7")
        a("s_cselect_b64 vcc, -1, 0")
        plan={0:[("X",0),("X",1)],1:[("X",2),("X",3)],2:[("W",0),("W",1)]}
        for ks in range(3):
            reads((ks+1)&1,ks+1)
            a("s_waitcnt lgkmcnt(6)")
            b=ks&1
            mf(b,0,0,vmode); dma1(*plan[ks][0],tag)
            mf(b,0,1,vmode); dma1(*plan[ks][1],tag)
            mf(b,1,0,vmode); mf(b,1,1,vmode)
        a(f"s_cmp_eq_u32 s{sCur}, {2*K1_STAGE}")
        csel(a,f"s{sDelta}",-2*K1_STAGE & 0xffffffff,K1_STAGE)
        for i in range(4): a(f"v_add_u32 v{aX+i}, s{sDelta}, v{aX+i}")
        for i in range(2): a(f"v_add_u32 v{aW+i}, s{sDelta}, v{aW+i}")
        a(f"s_cmp_eq_u32 s{sStep}, 9")
        a(f"s_cbranch_scc1 K1_LAST_{tag}")
        a(f"s_cmp_ge_u32 s{sStep}, 8")
        a(f"s_cbranch_scc1 K1_W0_{tag}")
        a("s_waitcnt vmcnt(6) lgkmcnt(0)")
        a(f"s_branch K1_W1_{tag}")
        a.label(f"K1_W0_{tag}")
        a("s_waitcnt vmcnt(0) lgkmcnt(0)")
        a.label(f"K1_W1_{tag}")
        a("s_barrier")
        reads(0,0)
        mfmas(1,vmode)
        a(f"s_mov_b32 s{sPrev}, s{sCur}")
        a(f"s_add_u32 s{sCur}, s{sCur}, s{sDelta}")
        a(f"s_add_u32 s{sStep}, s{sStep}, 1")
        a(f"s_branch K1_LOOP_{tag}")
        a.label(f"K1_LAST_{tag}")
        a("s_waitcnt lgkmcnt(0)")
        mfmas(1,vmode)
        a.nop(16)
        stamp(a,4)

    a("s_cmp_eq_u32 s21, 2")
    a("s_cbranch_scc1 K1_VPATH")
    a("v_lshrrev_b32 v4, 5, v1")
    a("s_lshl_b32 s30, s23, 5")
    a("s_lshl_b32 s31, s18, 4")
    a("s_add_u32 s30, s30, s31")
    a("v_add_u32 v2, s30, v4")
    a("v_and_b32 v3, 31, v1")
    a("v_lshlrev_b32 v8, 4, v3")
    a("v_lshlrev_b32 v9, 3, v3")
    a("v_add_u32 v9, 1024, v9")
    for nt in range(2):
        for rq in range(4):
            o=56+nt*4+rq
            a(f"v_add_u32 v5, {nt*8+rq*2}, v2")
            a("v_mul_u32_u24 v6, 13108, v5")
            a("v_lshrrev_b32 v6, 16, v6")
            a("v_mul_u32_u24 v7, 5, v6")
            a("v_sub_u32 v5, v5, v7")
            a("v_lshrrev_b32 v7, 1, v5")
            a("v_lshlrev_b32 v7, 9, v7")
            a("v_and_b32 v22, 1, v5")
            a("v_lshlrev_b32 v22, 3, v22")
            a("v_add3_u32 v7, v7, v22, v8")
            a("v_cmp_eq_u32 vcc, 4, v5")
            a(f"v_mul_lo_u32 v6, v6, s{sHS}")
            a("s_nop 0")
            a("v_cndmask_b32 v7, v7, v9, vcc")
            a(f"v_add_u32 v{o}, v6, v7")
    mainloop(False,"QK")
    a("s_cmp_eq_u32 s21, 0")
    a("s_cbranch_scc0 K1_NOSCALE")
    a(f"s_mov_b32 s47, {f32bits(QSCALE)}")
    for i in range(64): a(f"v_mul_f32 v{64+i}, s47, v{64+i}")
    a.label("K1_NOSCALE")
    k=0
    for mt in range(2):
        for nt in range(2):
            for rq in range(4):
                r=acc(mt,nt)+rq*4
                t=24+2*(k%8); k+=1
                a(f"v_cvt_pk_bf16_f32 v{t}, v{r}, v{r+1}")
                a(f"v_cvt_pk_bf16_f32 v{t+1}, v{r+2}, v{r+3}")
                a(f"buffer_store_dwordx2 v[{t}:{t+1}], v{56+nt*4+rq}, s[{SO}:{SO+3}], s{33+mt} offen")
    stamp(a,5)
    if PROF: a("s_waitcnt vmcnt(0)")
    stamp(a,6); stamp(a,7,True); stamp_flush(a,0,13)
    a("s_endpgm")
    a.label("K1_VPATH")
    a("v_and_b32 v3, 31, v1")
    a("s_lshl_b32 s30, s23, 7")
    a("s_lshl_b32 s31, s18, 6")
    a("s_add_u32 s30, s30, s31")
    a("v_add_u32 v2, s30, v3")
    a("v_lshrrev_b32 v4, 5, v1")
    a("v_mul_u32_u24 v4, 320, v4")
    a("v_add_u32 v4, 1280, v4")
    for nt in range(2):
        a(f"v_add_u32 v5, {32*nt}, v2")
        a("v_mul_u32_u24 v6, 3277, v5")
        a("v_lshrrev_b32 v6, 16, v6")
        a("v_mul_u32_u24 v7, 20, v6")
        a("v_sub_u32 v5, v5, v7")
        a("v_lshlrev_b32 v5, 4, v5")
        a(f"v_mul_lo_u32 v6, v6, s{sHS}")
        a(f"v_add3_u32 v{56+nt}, v6, v5, v4")
    mainloop(True,"V")
    k=0
    for mt in range(2):
        for nt in range(2):
            for g in range(2):
                r=acc(mt,nt)+g*8
                t=24+4*(k%8); k+=1
                for q in range(4):
                    a(f"v_cvt_pk_bf16_f32 v{t+q}, v{r+2*q}, v{r+2*q+1}")
                a(f"buffer_store_dwordx4 v[{t}:{t+3}], v{56+nt}, s[{SO}:{SO+3}], s{33+mt} offen offset:{g*640}")
    stamp(a,5)
    if PROF: a("s_waitcnt vmcnt(0)")
    stamp(a,6); stamp(a,7,True); stamp_flush(a,0,13)
    a("s_endpgm")

    a.label("K1_SPARE")
    a("s_lshl_b32 s30, s30, 1")
    a("s_add_u32 s30, s30, s31")
    a("s_sub_u32 s19, s30, 30")
    a("s_load_dwordx2 s[54:55], s[0:1], 16")
    a("s_load_dwordx4 s[44:47], s[0:1], 40")
    a("s_waitcnt lgkmcnt(0)")
    srd(a,4,36,37,S*D*2)
    srd(a,8,46,47,D*2)
    srd(a,12,42,43,WS_END)
    srd(a,20,54,55,D*D*2)
    srd(a,24,44,45,D*D*2)
    a("v_lshlrev_b32 v2, 4, v1")
    a("s_mul_i32 s30, s16, 5120")
    a("v_add_u32 v2, s30, v2")
    for si in range(3):
        lab=f"K1_SL{si}"
        a(f"s_add_u32 s31, s19, {16*si}")
        if si==2:
            a("s_cmp_ge_u32 s31, 40")
            a(f"s_cbranch_scc1 {lab}_SKIP")
        a("s_cmp_ge_u32 s31, 20")
        a("s_cselect_b32 s28, s24, s20")
        a("s_cselect_b32 s29, s25, s21")
        a("s_cselect_b32 s33, 20, 0")
        a("s_sub_u32 s33, s31, s33")
        a("s_mul_i32 s33, s33, 40960")
        a("s_mov_b32 s48, s28")
        a("s_mov_b32 s49, s29")
        a(f"s_mov_b32 s50, {D*D*2}")
        a("s_mov_b32 s51, 0x20000")
        a(f"s_add_u32 m0, s30, {si*40960}")
        a("s_nop 0")
        for q in range(4):
            a(f"buffer_load_dwordx4 v2, s[48:51], s33 offen offset:{q*1024} lds")
        a(f"s_add_u32 m0, s30, {si*40960+4096}")
        a("s_add_u32 s33, s33, 4096")
        a("buffer_load_dwordx4 v2, s[48:51], s33 offen lds")
        if si==2: a.label(f"{lab}_SKIP")
    a("v_lshrrev_b32 v3, 3, v1")
    a("s_lshl_b32 s30, s19, 7")
    a("s_lshl_b32 s31, s16, 4")
    a("s_add_u32 s30, s30, s31")
    a("v_add_u32 v3, s30, v3")
    a("v_and_b32 v4, 7, v1")
    a("v_lshlrev_b32 v4, 4, v4")
    a("v_mul_u32_u24 v5, 1280, v3")
    a("v_add_u32 v5, v5, v4")
    a("v_add_u32 v6, 10240, v5")
    for cs in range(10):
        a(f"buffer_load_dwordx4 v[{16+4*cs}:{19+4*cs}], v4, s[8:11], 0 offen offset:{cs*128}")
    for rg in range(2):
        for cs in range(10):
            b=56+rg*40+4*cs
            a(f"buffer_load_dwordx4 v[{b}:{b+3}], v{5+rg}, s[4:7], 0 offen offset:{cs*128}")
    a("s_waitcnt vmcnt(0)")
    for rg in range(2):
        a(f"v_mov_b32 v{8+rg}, 0")
        for cs in range(10):
            for q in range(4):
                a(f"v_dot2_f32_bf16 v{8+rg}, v{56+rg*40+4*cs+q}, v{16+4*cs+q}, v{8+rg}")
    a("s_nop 1")
    for rg in range(2):
        r=8+rg
        a(f"v_add_f32_dpp v{r}, v{r}, v{r} quad_perm:[1,0,3,2] row_mask:0xf bank_mask:0xf")
        a("s_nop 1")
        a(f"v_add_f32_dpp v{r}, v{r}, v{r} quad_perm:[2,3,0,1] row_mask:0xf bank_mask:0xf")
        a("s_nop 1")
        a(f"v_add_f32_dpp v{r}, v{r}, v{r} row_half_mirror row_mask:0xf bank_mask:0xf")
        a("s_nop 1")
        a(f"v_cvt_pk_bf16_f32 v{r}, v{r}, 0")
        a(f"v_lshlrev_b32 v{r}, 16, v{r}")
        a(f"v_mul_f32 v10, {f32bits(-1.4426950408889634)}, v{r}")
        a("v_exp_f32 v10, v10")
        a("s_nop 0")
        a("v_add_f32 v10, 1.0, v10")
        a("v_rcp_f32 v10, v10")
        a("s_nop 0")
        a("v_cvt_pk_bf16_f32 v10, v10, 0")
        a("v_lshlrev_b32 v10, 16, v10")
        a("v_sub_f32 v11, 1.0, v10")
        a("v_cvt_pk_bf16_f32 v11, v11, 0")
        a("v_lshlrev_b32 v11, 16, v11")
        a(f"v_add_u32 v12, {8*rg}, v3")
        a("v_lshlrev_b32 v12, 2, v12")
        a("v_and_b32 v13, 7, v1")
        a("v_cmp_eq_u32 vcc, 0, v13")
        a("s_and_saveexec_b64 s[52:53], vcc")
        a(f"buffer_store_dword v10, v12, s[12:15], 0 offen offset:0")
        a(f"v_add_u32 v12, {OFF_OMG}, v12")
        a(f"buffer_store_dword v11, v12, s[12:15], 0 offen")
        a("s_mov_b64 exec, s[52:53]")
    a("s_barrier")
    a("v_lshrrev_b32 v2, 4, v1")
    a("v_lshlrev_b32 v2, 3, v2")
    a("v_bfe_u32 v3, v1, 2, 2")
    a("v_add_u32 v2, v2, v3")
    a("v_mul_u32_u24 v2, 1280, v2")
    a("v_and_b32 v3, 3, v1")
    a("v_lshlrev_b32 v3, 3, v3")
    a("v_add_u32 v2, v2, v3")
    a("s_mul_i32 s30, s16, 160")
    a("v_add_u32 v2, s30, v2")
    a("v_lshlrev_b32 v4, 4, v1")
    for si in range(3):
        lab=f"K1_TR{si}"
        a(f"s_add_u32 s31, s19, {16*si}")
        if si==2:
            a("s_cmp_ge_u32 s31, 40")
            a(f"s_cbranch_scc1 K1_END")
        for q in range(5):
            for u in range(2):
                a(f"ds_read_b64_tr_b16 v[{16+4*q+2*u}:{17+4*q+2*u}], v2 offset:{q*32+u*5120}")
        a("v_add_u32 v2, 40960, v2")
        a("s_mul_i32 s33, s16, 200")
        a("s_add_u32 s33, s33, s31")
        a("s_lshl_b32 s33, s33, 10")
        a(f"s_add_u32 s33, s33, {OFF_WO}")
        a("s_waitcnt lgkmcnt(0)")
        for q in range(5):
            a(f"buffer_store_dwordx4 v[{16+4*q}:{19+4*q}], v4, s[12:15], s33 offen")
            if q<4: a(f"s_add_u32 s33, s33, {40*1024}")
        a("s_nop 1")
    a.label("K1_END")
    a("s_endpgm")
    return a, name, kernel_desc(name,136,60)


K2_SLOT=3328
K2_LDS=16*K2_SLOT
def band_mask(r, prev):
    m=0
    for l in range(64):
        q=l&31; hh=l>>5
        rho=8*(r>>2)+4*hh+(r&3)
        ok = (rho>=q+25) if prev else (q-7<=rho<=q)
        if ok: m|=1<<l
    return m

K2MASK=int(os.environ.get("K2MASK","1"))
def gen_k2():
    a=Asm(); name="attn_kernel"
    kernel_header(a,name)
    SKV,SWS=4,8
    S_=[8,24]
    def O(qi): return 40+16*qi
    def Q1(qi): return 104+4*qi
    def Q2(qi): return 120+4*qi
    K1=[136,140]; K2=[144,148]; V0=[152,160]; V1=[156,164]
    aK1,aK2,aV=2,3,4
    ONES=0x3F803F80
    W=f"s[{SWS}:{SWS+3}]"; KV=f"s[{SKV}:{SKV+3}]"
    def mfma(d,A,B,C):
        c = "0" if C is None else f"v[{C}:{C+15}]"
        a(f"v_mfma_f32_32x32x16_bf16 v[{d}:{d+15}], v[{A}:{A+3}], v[{B}:{B+3}], {c}")
    a("s_cmp_ge_u32 s2, 512")
    a("s_cbranch_scc1 K2_END")
    a("s_setprio 3")
    stamp(a,0,True); stamp(a,1)
    a("s_load_dwordx2 s[42:43], s[0:1], 72")
    a("v_and_b32 v1, 63, v0")
    a("v_lshrrev_b32 v5, 6, v0")
    a("s_and_b32 s30, s2, 7")
    a("v_readfirstlane_b32 s16, v5")
    a("s_lshr_b32 s31, s2, 3")
    a("s_lshr_b32 s17, s31, 4")
    a("s_lshl_b32 s30, s30, 2")
    a("s_add_u32 s17, s17, s30")
    a("s_and_b32 s18, s31, 15")
    a("s_mov_b32 s20, 0x000FFFFF")
    a("s_mov_b32 s21, 0x000FFFFF")
    a("s_mov_b32 s22, -1")
    a("s_mov_b32 s23, 0")
    a(f"v_lshlrev_b32 v{aK1}, 4, v1")
    a("v_and_b32 v5, 31, v1")
    a("v_lshrrev_b32 v6, 5, v1")
    a(f"v_lshlrev_b32 v{aK2}, 3, v5")
    a(f"v_add_u32 v{aK2}, 1024, v{aK2}")
    a(f"v_mul_u32_u24 v{aV}, 320, v6")
    a("v_lshlrev_b32 v7, 4, v5")
    a(f"v_add3_u32 v{aV}, v{aV}, v7, 0")
    a(f"v_add_u32 v{aV}, 1280, v{aV}")
    QA1,QA2,Kc1,Kc2,Kp1,Kp2,Vc0,Vc1,Vp1,Pp,vG=56,60,64,68,72,76,80,84,88,92,96
    for r in (QA2,QA2+1,QA2+2,QA2+3,Kc2+2,Kc2+3,Kp2+2,Kp2+3): a(f"v_mov_b32 v{r}, 0")
    a("v_cmp_eq_u32 vcc, 20, v5")
    a(f"v_mov_b32 v7, {hex(ONES)}")
    a("v_mov_b32 v8, 0")
    a("v_cndmask_b32 v7, v8, v7, vcc")
    for r in list(range(Vc0,Vc0+12))+list(range(152,168)): a(f"v_mov_b32 v{r}, v7")
    for qi in range(4):
        for r in range(4): a(f"v_mov_b32 v{Q2(qi)+r}, 0")
    for b in range(2):
        for r in range(4): a(f"v_mov_b32 v{K2[b]+r}, 0")
    a("s_mov_b64 exec, s[22:23]")
    for b in range(2):
        a(f"v_mov_b32 v{K2[b]+2}, {hex(ONES)}")
        a(f"v_mov_b32 v{K2[b]+3}, 0x3F80")
    a("s_mov_b64 exec, -1")
    a("s_lshl_b32 s27, s17, 6")
    a("s_lshr_b32 s29, s16, 1")
    a("s_and_b32 s33, s16, 1")
    a("s_lshl_b32 s34, s18, 1")
    a("s_add_u32 s33, s33, s34")
    a("s_lshl_b32 s34, s29, 5")
    a("s_add_u32 s34, s34, s33")
    a("s_add_u32 s35, s27, s34")
    a("s_mul_i32 s36, s35, 1280")
    a(f"s_add_u32 s36, s36, {OFF_QA}")
    a("s_mul_i32 s37, s35, 2560")
    a(f"s_add_u32 s37, s37, {OFF_KVA}")
    a("s_cmp_eq_u32 s33, 0")
    a("s_cselect_b32 s38, 0, 2560")
    a("s_sub_u32 s38, s37, s38")
    a("s_lshl_b32 s26, s18, 2")
    a("s_add_u32 s28, s27, s26")
    a("s_mul_i32 s28, s28, 1280")
    a(f"s_add_u32 s28, s28, {OFF_QB}")
    a("s_mul_i32 s25, s16, 40960")
    stamp(a,8)
    a("s_waitcnt lgkmcnt(0)")
    stamp(a,9)
    a("s_mul_i32 s30, s17, 163840")
    a(f"s_add_u32 s30, s30, {OFF_KVB}")
    a("s_add_u32 s4, s42, s30")
    a("s_addc_u32 s5, s43, 0")
    a("s_mov_b32 s6, 163840")
    a("s_mov_b32 s7, 0x20000")
    srd(a,SWS,42,43,WS_END)
    a(f"buffer_load_dwordx4 v[{QA1}:{QA1+3}], v{aK1}, {W}, s36 offen")
    a(f"buffer_load_dwordx4 v[{Kc1}:{Kc1+3}], v{aK1}, {W}, s37 offen")
    a(f"buffer_load_dwordx2 v[{Kc2}:{Kc2+1}], v{aK2}, {W}, s37 offen")
    a(f"buffer_load_dwordx4 v[{Kp1}:{Kp1+3}], v{aK1}, {W}, s38 offen")
    a(f"buffer_load_dwordx2 v[{Kp2}:{Kp2+1}], v{aK2}, {W}, s38 offen")
    a("s_mov_b64 exec, s[22:23]")
    a(f"buffer_load_dwordx2 v[{QA2}:{QA2+1}], v{aK2}, {W}, s36 offen")
    a("s_mov_b64 exec, s[20:21]")
    a(f"buffer_load_dwordx4 v[{Vc0}:{Vc0+3}], v{aV}, {W}, s37 offen")
    a(f"buffer_load_dwordx4 v[{Vc1}:{Vc1+3}], v{aV}, {W}, s37 offen offset:640")
    a(f"buffer_load_dwordx4 v[{Vp1}:{Vp1+3}], v{aV}, {W}, s38 offen offset:640")
    a("s_mov_b64 exec, -1")
    a("s_lshl_b32 s39, s33, 6")
    a("s_add_u32 s39, s39, s29")
    a("v_lshlrev_b32 v98, 1, v5")
    a("v_add_u32 v98, s39, v98")
    a("v_lshlrev_b32 v7, 2, v98")
    a(f"buffer_load_dword v{vG}, v7, {W}, 0 offen")
    stamp(a,10)
    def ldK(b,soff,imm=0):
        a(f"buffer_load_dwordx4 v[{K1[b]}:{K1[b]+3}], v{aK1}, {KV}, {soff} offen offset:{imm}")
        if K2MASK: a("s_mov_b64 exec, s[22:23]")
        a(f"buffer_load_dwordx2 v[{K2[b]}:{K2[b]+1}], v{aK2}, {KV}, {soff} offen offset:{imm}")
        if K2MASK: a("s_mov_b64 exec, -1")
    def ldV(b,soff,imm=0):
        a("s_mov_b64 exec, s[20:21]")
        a(f"buffer_load_dwordx4 v[{V0[b]}:{V0[b]+3}], v{aV}, {KV}, {soff} offen offset:{imm}")
        a(f"buffer_load_dwordx4 v[{V1[b]}:{V1[b]+3}], v{aV}, {KV}, {soff} offen offset:{imm+640}")
        a("s_mov_b64 exec, -1")
    ldK(0,"s25")
    for qi in range(4):
        a(f"buffer_load_dwordx4 v[{Q1(qi)}:{Q1(qi)+3}], v{aK1}, {W}, s28 offen offset:{qi*1280}")
    a("s_mov_b64 exec, s[22:23]")
    a("s_add_u32 s30, s28, 2560")
    for qi in range(4):
        a(f"buffer_load_dwordx2 v[{Q2(qi)}:{Q2(qi)+1}], v{aK2}, {W}, {'s28' if qi<2 else 's30'} offen offset:{(qi%2)*1280}")
    a("s_mov_b64 exec, -1")
    ldK(1,"s25",2560)
    ldV(0,"s25")
    stamp(a,11)
    def ooff(dst, tok, t1, t2):
        a(f"v_lshlrev_b32 v{t1}, 2, v6")
        a(f"v_add_u32 v{t1}, s39, v{t1}")
        a(f"v_lshrrev_b32 v{t2}, 3, v{t1}")
        a(f"v_lshlrev_b32 v{t2}, 8, v{t2}")
        a(f"v_and_b32 v{t1}, 4, v{t1}")
        a(f"v_lshlrev_b32 v{t1}, 1, v{t1}")
        a(f"v_add_u32 v{t2}, v{t2}, v{t1}")
        a(f"v_lshrrev_b32 v{t1}, 4, v{tok}")
        a(f"v_mul_u32_u24 v{t1}, 40960, v{t1}")
        a(f"v_add_u32 v{t2}, v{t2}, v{t1}")
        a(f"v_and_b32 v{t1}, 15, v{tok}")
        a(f"v_lshlrev_b32 v{t1}, 4, v{t1}")
        a(f"v_add_u32 v{t2}, v{t2}, v{t1}")
        a(f"v_add_u32 v{dst}, {OFF_O}, v{t2}")
    a("s_mul_i32 s39, s17, 20")
    ooff(97,98,99,100)
    stamp(a,12)

    def epilogue(Ob, vscale_src, voff, Pk, t1, t2):
        a(f"v_mov_b32 v{t1}, v{Ob+8}")
        a(f"v_mov_b32 v{t2}, v{Ob+8}")
        a("s_nop 1")
        a(f"v_permlane32_swap_b32 v{t1}, v{t2}")
        a("s_nop 1")
        a(f"v_rcp_f32 v{t1}, v{t2}")
        a("s_nop 0")
        a(f"v_mul_f32 v{t1}, v{t1}, v{vscale_src}")
        for i in range(12): a(f"v_mul_f32 v{Ob+i}, v{t1}, v{Ob+i}")
        for rq in range(3):
            a(f"v_cvt_pk_bf16_f32 v{Pk+2*rq}, v{Ob+4*rq}, v{Ob+4*rq+1}")
            a(f"v_cvt_pk_bf16_f32 v{Pk+2*rq+1}, v{Ob+4*rq+2}, v{Ob+4*rq+3}")
        for rq in range(3):
            if rq==2: a("s_mov_b64 exec, s[22:23]")
            a(f"buffer_store_dwordx2 v[{Pk+2*rq}:{Pk+2*rq+1}], v{voff}, {W}, 0 offen offset:{256*rq}")
        a("s_mov_b64 exec, -1")

    SA,SB=S_
    OA=40
    stamp(a,2)
    a("s_waitcnt vmcnt(14)")
    stamp(a,3)
    mfma(SA,Kc1,QA1,None); mfma(SA,Kc2,QA2,SA)
    mfma(SB,Kp1,QA1,None); mfma(SB,Kp2,QA2,SB)
    a("v_mov_b32 v7, 0xff800000")
    a.nop(12)
    k=0
    for r in range(16):
        m=band_mask(r,False); sp=44+2*(k%4); k+=1
        a(f"s_mov_b32 s{sp}, {hex(m&0xffffffff)}"); a(f"s_mov_b32 s{sp+1}, {hex(m>>32)}")
        a(f"v_cndmask_b32 v{SA+r}, v7, v{SA+r}, s[{sp}:{sp+1}]")
    a("s_cmp_eq_u32 s33, 0")
    a("s_cselect_b32 s52, 0, -1")
    for r in range(12,16):
        m=band_mask(r,True); sp=44+2*(k%4); k+=1
        a(f"s_and_b32 s{sp}, s52, {hex(m&0xffffffff)}"); a(f"s_and_b32 s{sp+1}, s52, {hex(m>>32)}")
        a(f"v_cndmask_b32 v{SB+r}, v7, v{SB+r}, s[{sp}:{sp+1}]")
    vals=[SA+r for r in range(16)]+[SB+r for r in range(12,16)]
    def rowmax(vals,dst,tmp):
        a(f"v_max3_f32 v{dst}, v{vals[0]}, v{vals[1]}, v{vals[2]}")
        i=3
        while i+1<len(vals):
            a(f"v_max3_f32 v{dst}, v{dst}, v{vals[i]}, v{vals[i+1]}"); i+=2
        if i<len(vals): a(f"v_max_f32 v{dst}, v{dst}, v{vals[i]}")
        a(f"v_mov_b32 v{tmp}, v{dst}")
        a("s_nop 1")
        a(f"v_permlane32_swap_b32 v{tmp}, v{dst}")
        a("s_nop 1")
        a(f"v_max_f32 v{dst}, v{tmp}, v{dst}")
    rowmax(vals,7,5)
    for r in vals: a(f"v_sub_f32 v{r}, v{r}, v7")
    for r in vals: a(f"v_exp_f32 v{r}, v{r}")
    a("s_nop 0")
    PA=SB
    for q in range(8): a(f"v_cvt_pk_bf16_f32 v{PA+q}, v{SA+2*q}, v{SA+2*q+1}")
    a(f"v_mov_b32 v{Pp}, 0"); a(f"v_mov_b32 v{Pp+1}, 0")
    a(f"v_cvt_pk_bf16_f32 v{Pp+2}, v{SB+12}, v{SB+13}")
    a(f"v_cvt_pk_bf16_f32 v{Pp+3}, v{SB+14}, v{SB+15}")
    a("s_nop 1")
    mfma(OA,Vc0,PA,None); mfma(OA,Vc1,PA+4,OA); mfma(OA,Vp1,Pp,OA)
    a.nop(12)
    epilogue(OA,vG,97,SA,5,7)

    a("s_waitcnt vmcnt(3)")
    for qi in range(4):
        mfma(O(qi),K1[0],Q1(qi),None); mfma(O(qi),K2[0],Q2(qi),O(qi))
    a.nop(6)
    for qi in range(4):
        if qi==3: a.nop(2)
        rowmax([O(qi)+i for i in range(16)],7,5)
        a("v_sub_f32 v7, 0, v7")
        a("v_cvt_pk_bf16_f32 v7, v7, 0")
        a("s_mov_b64 exec, s[22:23]")
        a(f"v_mov_b32 v{Q2(qi)+2}, v7")
        a("s_mov_b64 exec, -1")
    mfma(S_[0],K1[0],Q1(0),None); mfma(S_[0],K2[0],Q2(0),S_[0])
    for i in range(64): a(f"v_mov_b32 v{40+i}, 0")
    for i in range(8,12): a(f"v_mov_b32 v{S_[1]+i}, 0")

    def ldK2(b,delta):
        a(f"s_add_u32 s53, s25, {delta*2560}")
        ldK(b,"s53")
    def ldV2(b,delta):
        a(f"s_add_u32 s53, s25, {delta*2560}")
        ldV(b,"s53")
    def item(t, qi, kload, vload, kw, vw, last):
        n=t*4+qi; p=n&1
        Sc=S_[p]; Sn=S_[1-p]
        qp=(qi-1)%4; tp=t if qi>0 else t-1
        qn=(qi+1)%4; tn=t if qi<3 else t+1
        def ex(i): a(f"v_exp_f32 v{Sc+i}, v{Sc+i}")
        def cv(i):
            dst = Sc + (i//2 if i<8 else 8+(i-8)//2)
            a(f"v_cvt_pk_bf16_f32 v{dst}, v{Sc+i}, v{Sc+i+1}")
        ex(0); ex(1)
        mfma(O(qp),V1[tp&1],Sn+8,O(qp))
        ex(2)
        if qi==0 and vload: ldV2((t+1)&1,t+1)
        if qi==3 and kload: ldK2(t&1,t+2)
        ex(3); cv(0); cv(2)
        ex(4)
        if qi==3 and not last: a(f"s_waitcnt vmcnt({kw})")
        ex(5)
        if not last: mfma(Sn,K1[tn&1],Q1(qn),None)
        ex(6); ex(7); cv(4); cv(6)
        ex(8)
        if not last: mfma(Sn,K2[tn&1],Q2(qn),Sn)
        ex(9); ex(10); ex(11); cv(8); cv(10)
        ex(12)
        if qi==0: a(f"s_waitcnt vmcnt({vw})")
        ex(13)
        mfma(O(qi),V0[t&1],Sc,O(qi))
        ex(14); ex(15); cv(12); cv(14)

    stamp(a,4)
    gstamp_setup(a,1)
    a("s_mov_b32 s40, 0")
    a("s_setprio 1")
    a.label("K2_LOOP")
    gstamp(a,40)
    for t in range(2):
        for qi in range(4): item(t,qi,True,True,4,4,False)
    a("s_add_u32 s25, s25, 5120")
    a("s_add_u32 s40, s40, 1")
    a("s_cmp_lt_u32 s40, 7")
    a("s_cbranch_scc1 K2_LOOP")
    gstamp(a,40)
    a("s_setprio 0")
    for qi in range(4): item(0,qi,False,True,2,4,False)
    a("s_add_u32 s30, s26, s16")
    a("s_lshl_b32 s30, s30, 5")
    a("v_and_b32 v5, 31, v1")
    a("v_add_u32 v0, s30, v5")
    a("v_lshlrev_b32 v5, 2, v0")
    a(f"v_add_u32 v5, {OFF_OMG}, v5")
    a(f"buffer_load_dword v{K1[0]}, v5, {W}, 0 offen")
    for qi in range(4): item(1,qi,False,False,0,1,qi==3)
    a("s_nop 1")
    mfma(O(3),V1[1],S_[1]+8,O(3))
    a("s_setprio 3")
    stamp(a,5)
    a(f"s_mul_i32 s30, s16, {K2_SLOT}")
    a(f"v_add_u32 v5, s30, v{aK1}")
    a("v_lshlrev_b32 v7, 2, v1")
    a("v_add_u32 v7, s30, v7")
    a.nop(8)
    for qi in range(4):
        for rq in range(3):
            a(f"ds_write_b128 v5, v[{O(qi)+4*rq}:{O(qi)+4*rq+3}] offset:{qi*4*K2_SLOT+rq*1024}")
        a(f"ds_write_b32 v7, v{Q2(qi)+2} offset:{qi*4*K2_SLOT+3072}")
    a("s_waitcnt lgkmcnt(0)")
    a("s_barrier")
    a(f"s_mul_i32 s30, s16, {4*K2_SLOT}")
    a(f"v_add_u32 v5, s30, v{aK1}")
    a("v_and_b32 v7, 31, v1")
    a("v_lshlrev_b32 v7, 2, v7")
    a("v_add_u32 v7, s30, v7")
    PB=40
    for sidx in range(4):
        for rq in range(3):
            a(f"ds_read_b128 v[{PB+16*sidx+4*rq}:{PB+16*sidx+4*rq+3}], v5 offset:{sidx*K2_SLOT+rq*1024}")
        a(f"ds_read_b32 v{PB+16*sidx+12}, v7 offset:{sidx*K2_SLOT+3072}")
    a("s_mul_i32 s39, s17, 20")
    a("s_add_u32 s39, s39, 640")
    a("v_lshrrev_b32 v6, 5, v1")
    ooff(8,0,9,10)
    a("s_waitcnt lgkmcnt(0)")
    for sidx in range(4): a(f"v_lshlrev_b32 v{PB+16*sidx+12}, 16, v{PB+16*sidx+12}")
    a(f"v_min_f32 v11, v{PB+12}, v{PB+28}")
    a(f"v_min3_f32 v11, v11, v{PB+44}, v{PB+60}")
    for sidx in range(4): a(f"v_sub_f32 v{PB+16*sidx+12}, v11, v{PB+16*sidx+12}")
    for sidx in range(4): a(f"v_exp_f32 v{PB+16*sidx+12}, v{PB+16*sidx+12}")
    a("s_nop 0")
    for i in range(12): a(f"v_mul_f32 v{PB+i}, v{PB+12}, v{PB+i}")
    for sidx in range(1,4):
        for i in range(12): a(f"v_fmac_f32 v{PB+i}, v{PB+16*sidx+12}, v{PB+16*sidx+i}")
    a("s_waitcnt vmcnt(0)")
    epilogue(PB,K1[0],8,12,9,10)
    if PROF: a("s_waitcnt vmcnt(0)")
    stamp(a,6); stamp(a,7,True); stamp_flush(a,1,13)
    a.label("K2_END")
    a("s_endpgm")
    return a, name, kernel_desc(name,168,64)

K3_RS=336
K3_LDS=4*64*K3_RS
def gen_k3(name):
    a=Asm()
    kernel_header(a,name)
    SWS,SOUT=4,8
    DEPTH=6
    def buf(s): return 16+(s%DEPTH)*36
    a("s_cmp_ge_u32 s2, 256")
    a("s_cbranch_scc1 K3_END")
    stamp(a,0,True); stamp(a,1)
    a("s_load_dwordx2 s[42:43], s[0:1], 72")
    a("s_load_dwordx2 s[40:41], s[0:1], 56")
    a("v_and_b32 v1, 63, v0")
    a("v_lshrrev_b32 v5, 6, v0")
    a("s_and_b32 s30, s2, 7")
    a("v_readfirstlane_b32 s16, v5")
    a("s_lshr_b32 s31, s2, 3")
    a("s_lshr_b32 s17, s31, 3")
    a("s_lshl_b32 s30, s30, 2")
    a("s_add_u32 s17, s17, s30")
    a("s_and_b32 s18, s31, 7")
    a("s_mul_i32 s19, s16, 10240")
    a("v_lshlrev_b32 v2, 4, v1")
    a("v_add_u32 v2, s19, v2")
    a("v_add_u32 v3, 4096, v2")
    a("v_add_u32 v4, 8192, v2")
    a("s_mul_i32 s20, s17, 163840")
    a(f"s_add_u32 s20, s20, {OFF_O}")
    for mt in range(1,4): a(f"s_add_u32 s{20+mt}, s20, {mt*40960}")
    a("s_mul_i32 s24, s18, 204800")
    a(f"s_add_u32 s24, s24, {OFF_WO}")
    for nt in range(1,5): a(f"s_add_u32 s{24+nt}, s24, {nt*40960}")
    a("s_waitcnt lgkmcnt(0)")
    srd(a,SWS,42,43,WS_END)
    srd(a,SOUT,40,41,S*D*2)
    def loads(s):
        b=buf(s); vo=2+s//4; io=(s%4)*1024
        for mt in range(4):
            a(f"buffer_load_dwordx4 v[{b+4*mt}:{b+4*mt+3}], v{vo}, s[{SWS}:{SWS+3}], s{20+mt} offen offset:{io}")
        for nt in range(5):
            a(f"buffer_load_dwordx4 v[{b+16+4*nt}:{b+16+4*nt+3}], v{vo}, s[{SWS}:{SWS+3}], s{24+nt} offen offset:{io}")
    for s_ in range(DEPTH): loads(s_)
    for i in range(80): a(f"v_accvgpr_write_b32 a{i}, 0")
    a("v_and_b32 v5, 15, v1")
    a(f"v_mul_u32_u24 v5, {K3_RS}, v5")
    a("v_lshrrev_b32 v6, 4, v1")
    a("v_lshlrev_b32 v6, 4, v6")
    a(f"s_mul_i32 s19, s16, {64*K3_RS}")
    a("v_add3_u32 v5, v5, v6, s19")
    stamp(a,2)
    for s_ in range(10):
        later=min(s_+DEPTH-1,9)-s_
        a(f"s_waitcnt vmcnt({9*later})")
        if s_==0: stamp(a,3)
        b=buf(s_)
        for mt in range(4):
            for nt in range(5):
                d=(mt*5+nt)*4
                a(f"v_mfma_f32_16x16x32_bf16 a[{d}:{d+3}], v[{b+16+4*nt}:{b+16+4*nt+3}], v[{b+4*mt}:{b+4*mt+3}], a[{d}:{d+3}]")
        if s_+DEPTH<=9: loads(s_+DEPTH)
    a.nop(8)
    stamp(a,4)
    for mt in range(4):
        for nt in range(5):
            d=(mt*5+nt)*4
            a(f"ds_write_b128 v5, a[{d}:{d+3}] offset:{mt*16*K3_RS+nt*64}")
    a("s_waitcnt lgkmcnt(0)")
    a("s_barrier")
    stamp(a,5)
    a("s_lshl_b32 s19, s17, 6")
    a("s_mul_i32 s19, s19, 1280")
    a("s_mul_i32 s30, s18, 160")
    a("s_add_u32 s19, s19, s30")
    for rnd in range(3):
        if rnd==2:
            a("s_cmp_ge_u32 s16, 2")
            a("s_cbranch_scc1 K3_FIN")
        a(f"v_add_u32 v6, {256*rnd}, v0")
        a("v_mul_u32_u24 v7, 6554, v6")
        a("v_lshrrev_b32 v7, 16, v7")
        a("v_mul_u32_u24 v8, 10, v7")
        a("v_sub_u32 v8, v6, v8")
        a(f"v_mul_u32_u24 v9, {K3_RS}, v7")
        a("v_lshlrev_b32 v10, 5, v8")
        a("v_add_u32 v9, v9, v10")
        for p in range(4):
            for hlf in range(2):
                off=p*64*K3_RS+hlf*16
                a(f"ds_read_b128 v[{16+p*8+hlf*4}:{19+p*8+hlf*4}], v9 offset:{off}")
        a("v_mul_u32_u24 v7, 1280, v7")
        a("v_lshlrev_b32 v8, 4, v8")
        a("v_add_u32 v7, v7, v8")
        a("s_waitcnt lgkmcnt(0)")
        for i in range(8):
            a(f"v_add_f32 v{16+i}, v{16+i}, v{24+i}")
            a(f"v_add_f32 v{32+i}, v{32+i}, v{40+i}")
        for i in range(8): a(f"v_add_f32 v{16+i}, v{16+i}, v{32+i}")
        for i in range(4): a(f"v_cvt_pk_bf16_f32 v{48+4*rnd+i}, v{16+2*i}, v{17+2*i}")
        a(f"buffer_store_dwordx4 v[{48+4*rnd}:{51+4*rnd}], v7, s[{SOUT}:{SOUT+3}], s19 offen")
    a.label("K3_FIN")
    if PROF: a("s_waitcnt vmcnt(0)")
    stamp(a,6); stamp(a,7,True); stamp_flush(a,2,8)
    a.label("K3_END")
    a("s_endpgm")
    return a, name, kernel_desc(name,256+80,48,accum=256)

def build(kernels, launches, path):
    hdr=f"""; gated_mix: sliding-local-dilated (A) + full softmax MHA (B), gated mix.  3 launches.
"""
    for l in launches: hdr+=l+"\n"
    hdr+='.amdgcn_target "amdgcn-amd-amdhsa--gfx950"\n.text\n'
    body=""
    for a,name,desc in kernels:
        errs=a.check(name)
        for e in errs: print("HAZARD",e,file=sys.stderr)
        body+=a.text()+desc
    open(path,"w").write(hdr+body)

if __name__=="__main__":
    ks=[gen_k1(),gen_k2(),gen_k3("oproj_kernel")]
    launches=[f"; @launch kernel=qkv_kernel grid=(256,1,1) block=(512,1,1) lds={K1_LDS}",
              f"; @launch kernel=attn_kernel grid=(512,1,1) block=(256,1,1) lds={K2_LDS}",
              f"; @launch kernel=oproj_kernel grid=(256,1,1) block=(256,1,1) lds={K3_LDS}"]
    out=sys.argv[1] if len(sys.argv)>1 else "k.s"
    build(ks,launches,out)
```

```python
import sys
def kernel(name, body, iters=200, init="", vgpr=256, accum=256, unroll=1):
    s = f"""
.text
.globl {name}
.p2align 8
.type {name},@function
{name}:
    s_load_dwordx2 s[4:5], s[0:1], 0
    s_load_dwordx2 s[6:7], s[0:1], 8
    s_waitcnt lgkmcnt(0)
    v_lshrrev_b32 v2, 6, v0
    s_nop 1
    v_readfirstlane_b32 s20, v2
    v_and_b32 v3, 63, v0
"""
    for i in range(6, vgpr):
        s += f"    v_mov_b32 v{i}, 0\n"
    s += init + "\n"
    s += f"""
    s_mov_b32 s21, {iters}
    s_barrier
    s_memrealtime s[40:41]
    s_memtime s[8:9]
    s_waitcnt lgkmcnt(0)
.p2align 6
L_{name}:
"""
    s += body * unroll
    s += f"""
    s_sub_u32 s21, s21, 1
    s_cmp_lg_u32 s21, 0
    s_cbranch_scc1 L_{name}
    s_memtime s[10:11]
    s_memrealtime s[42:43]
    s_waitcnt lgkmcnt(0)
    s_sub_u32 s12, s10, s8
    s_sub_u32 s44, s42, s40
    v_mov_b32 v4, s12
    v_mov_b32 v2, s44
    s_lshr_b32 s13, s22, 0
    s_mul_i32 s14, s2, WAVES_{name}
    s_add_u32 s14, s14, s20
    s_lshl_b32 s14, s14, 2
    v_mov_b32 v5, s14
    v_cmp_eq_u32 vcc, 0, v3
    s_and_saveexec_b64 s[16:17], vcc
    s_cbranch_execz L_end_{name}
    global_store_dword v5, v4, s[4:5]
    v_add_u32 v5, 0x40000, v5
    global_store_dword v5, v2, s[4:5]
L_end_{name}:
    s_endpgm
.section .rodata,"a"
.p2align 6
.amdhsa_kernel {name}
  .amdhsa_next_free_vgpr {vgpr}
  .amdhsa_next_free_sgpr 64
  .amdhsa_accum_offset {accum}
  .amdhsa_group_segment_fixed_size 0
  .amdhsa_kernarg_size 16
  .amdhsa_user_sgpr_count 2
  .amdhsa_user_sgpr_kernarg_segment_ptr 1
  .amdhsa_system_sgpr_workgroup_id_x 1
.end_amdhsa_kernel
"""
    return s
def meta(names, vgpr=256):
    s = """
.amdgpu_metadata
---
amdhsa.version: [1, 2]
amdhsa.kernels:
"""
    for n in names:
        s += f"""  - .name: {n}
    .symbol: {n}.kd
    .kernarg_segment_size: 16
    .kernarg_segment_align: 8
    .group_segment_fixed_size: 0
    .private_segment_fixed_size: 0
    .wavefront_size: 64
    .sgpr_count: 64
    .vgpr_count: {vgpr}
    .max_flat_workgroup_size: 1024
    .args:
      - {{.name: outp, .size: 8, .offset: 0, .value_kind: global_buffer, .address_space: global}}
      - {{.name: inp, .size: 8, .offset: 8, .value_kind: global_buffer, .address_space: global}}
"""
    s += "...\n.end_amdgpu_metadata\n"
    return s
HDR = '.amdgcn_target "amdgcn-amd-amdhsa--gfx950"\n'
def build(kernels, fname):
    out = HDR
    names=[]
    for name, body, kw, waves in kernels:
        out += f".set WAVES_{name}, {waves}\n"
        out += kernel(name, body, **kw)
        names.append(name)
    out += meta(names)
    open(fname,"w").write(out)
```

```python
from mbgen import *
ks=[]; cmds=[]
def mk(name, pat, waves=8, NL=4, infl=12):
    per_iter_rows = 8*NL*waves
    init=f"""
    s_mov_b32 s24, s6
    s_mov_b32 s25, s7
    s_mov_b32 s26, 0x4000000
    s_mov_b32 s27, 0x20000
"""
    if pat=="lin":
        init+="    v_lshlrev_b32 v6, 4, v3\n"
        stride=1024
    elif pat in ("row128","row128x","row128x4"):
        init+="""
    v_lshrrev_b32 v7, 3, v3
    v_mul_u32_u24 v7, 1280, v7
    v_and_b32 v8, 7, v3
"""
        if pat=="row128x": init+="    v_lshrrev_b32 v9, 4, v3\n    v_xor_b32 v8, v8, v9\n    v_xor_b32 v8, 1, v8\n"
        if pat=="row128x4": init+="    v_bfe_u32 v9, v3, 4, 1\n    v_lshlrev_b32 v9, 2, v9\n    v_xor_b32 v8, v8, v9\n"
        init+="    v_lshlrev_b32 v8, 4, v8\n    v_add_u32 v6, v7, v8\n"
        stride=8*1280
    elif pat=="row64":
        init+="""
    v_lshrrev_b32 v7, 2, v3
    v_mul_u32_u24 v7, 2560, v7
    v_and_b32 v8, 3, v3
    v_lshlrev_b32 v8, 4, v8
    v_add_u32 v6, v7, v8
"""
        stride=16*2560
    elif pat in ("row256","row256x"):
        init+="""
    v_lshrrev_b32 v7, 4, v3
    v_mul_u32_u24 v7, 3840, v7
    v_and_b32 v8, 15, v3
"""
        if pat=="row256x": init+="    v_lshrrev_b32 v9, 4, v3\n    v_lshlrev_b32 v9, 2, v9\n    v_xor_b32 v8, v8, v9\n"
        init+="    v_lshlrev_b32 v8, 4, v8\n    v_add_u32 v6, v7, v8\n"
        stride=4*3840
    init+=f"""
    s_mul_i32 s29, s20, {stride*NL}
    v_add_u32 v6, s29, v6
    s_lshr_b32 s30, s2, 3
    s_and_b32 s30, s30, 7
    s_mul_i32 s30, s30, {stride*NL*waves}
    s_mov_b32 s28, s30
    s_lshl_b32 s32, s20, 12
    s_mov_b32 s34, 0
"""
    body=""
    for j in range(NL):
        body+=f"    s_add_u32 m0, s32, {j*1024}\n    s_add_u32 s33, s28, {j*stride}\n    buffer_load_dwordx4 v6, s[24:27], s33 offen lds\n"
    adv=64 if pat=="row64" else 128
    body+=f"    s_add_u32 s28, s28, {adv}\n    s_add_u32 s34, s34, 1\n    s_cmp_lt_u32 s34, 8\n    s_cselect_b32 s28, s28, s30\n    s_cselect_b32 s34, s34, 0\n"
    body+=f"    s_waitcnt vmcnt({infl})\n"
    ks.append((name, body, dict(iters=200, vgpr=128, accum=128, init=init), waves))
    cmds.append(f"{name} 256 {waves*64} {waves*4096}")
for p in ("lin","row128x","row64","row256x"): mk("p_"+p,p)
build(ks,"mb10.s")
open("mb10.cmd","w").write(" ".join(cmds))
```
